```python
import torch

def _softmax(x, axis=-1):
    return torch.softmax(x, dim=axis)
def _gelu(x):
    return torch.nn.functional.gelu(x, approximate="tanh")
def _silu(x):
    return torch.nn.functional.silu(x)
def _sigmoid(x):
    return torch.sigmoid(x)
def _layernorm(x, axis=-1, eps=1e-5):
    m = x.mean(dim=axis, keepdim=True)
    v = x.var(dim=axis, keepdim=True, unbiased=False)
    return (x - m) / torch.sqrt(v + eps)
def _scatter_add(tgt, idx, src, axis=0):
    return tgt.clone().index_add_(axis, idx, src)
def _segment_sum(src, seg, n):
    out = torch.zeros((n,) + src.shape[1:], dtype=src.dtype)
    return out.index_add_(0, seg, src)
def _pad(x, pw):
    flat = tuple(v for pair in reversed(pw) for v in pair)
    return torch.nn.functional.pad(x, flat)

kernel_name = 'interleave_layers__ssm_conv_s4__geglu_ffn__prompt'

def setup_inputs():

    _w = (lambda a: (lambda t: t.to(torch.bfloat16) if t.is_floating_point() else t)(torch.as_tensor(a)))
    def _A_setup():
        B, L, D, N = 1, 2048, 512, 128
        A_re = -(lambda _x: torch.exp(torch.as_tensor(_x)))((lambda *s: torch.randn(*s, dtype=torch.bfloat16) * 1.6)(D, N))
        A_im = torch.pi * (lambda *s: torch.randn(*s, dtype=torch.bfloat16) * 0.2)(D, N)
        B_re = (lambda *s: torch.randn(*s, dtype=torch.bfloat16) * 0.2)(D, N)
        B_im = (lambda *s: torch.randn(*s, dtype=torch.bfloat16) * 0.2)(D, N)
        C_re = (lambda *s: torch.randn(*s, dtype=torch.bfloat16) * 0.2)(D, N)
        C_im = (lambda *s: torch.randn(*s, dtype=torch.bfloat16) * 0.2)(D, N)
        log_dt = (lambda *s: torch.randn(*s, dtype=torch.bfloat16) * 0.2)(D) * 0.5 - 4.0
        Dskip = (lambda *s: torch.randn(*s, dtype=torch.bfloat16) * 0.2)(D)
        return {
            "u": _w((lambda *s: torch.randn(*s, dtype=torch.bfloat16) * 0.05)(B, L, D)),
            "A_re": _w(A_re),
            "A_im": _w(A_im),
            "B_re": _w(B_re),
            "B_im": _w(B_im),
            "C_re": _w(C_re),
            "C_im": _w(C_im),
            "log_dt": _w(log_dt),
            "Dskip": _w(Dskip),
        }
    _A_in = _A_setup()

    def _B_setup():
        B, S, D, F = 1, 2048, 512, 1376
        return {
            "x": _w((lambda *s: torch.randn(*s, dtype=torch.bfloat16) * 0.05)(B, S, D)),
            "w_gate": _w((lambda *s: torch.randn(*s, dtype=torch.bfloat16) * 0.05)(D, F)),
            "w_up": _w((lambda *s: torch.randn(*s, dtype=torch.bfloat16) * 0.05)(D, F)),
            "w_down": _w((lambda *s: torch.randn(*s, dtype=torch.bfloat16) * 0.05)(F, D)),
        }
    _B_in = _B_setup()

    return {
        "A_u": _A_in["u"],
        "A_A_re": _A_in["A_re"],
        "A_A_im": _A_in["A_im"],
        "A_B_re": _A_in["B_re"],
        "A_B_im": _A_in["B_im"],
        "A_C_re": _A_in["C_re"],
        "A_C_im": _A_in["C_im"],
        "A_log_dt": _A_in["log_dt"],
        "A_Dskip": _A_in["Dskip"],
        "B_x": _B_in["x"],
        "B_w_gate": _B_in["w_gate"],
        "B_w_up": _B_in["w_up"],
        "B_w_down": _B_in["w_down"],
    }

def reference(A_u, A_A_re, A_A_im, A_B_re, A_B_im, A_C_re, A_C_im, A_log_dt, A_Dskip, B_x, B_w_gate, B_w_up, B_w_down):
    def _A_ref(u, A_re, A_im, B_re, B_im, C_re, C_im, log_dt, Dskip):
        Bsz, L, D = u.shape
        dt = torch.exp(log_dt)[:, None]
        A = A_re + 1j * A_im
        Bc = B_re + 1j * B_im
        Cc = C_re + 1j * C_im
        logdA = dt * A
        dB = dt * Bc
        l = (lambda x, dt: x.to(dt))(torch.arange(L), A_re.dtype)
        P = torch.exp(logdA[:, :, None] * l[None, None, :])
        K = torch.einsum("dn,dnl,dn->dl", Cc, P, dB).real
        L2 = 2 * L
        Kp = _pad(K, ((0, 0), (0, L)))
        up = (lambda x, *d: x.permute(*d))(u, 0, 2, 1)
        up = _pad(up, ((0, 0), (0, 0), (0, L)))
        Kf = (lambda x, axes=(-2,-1): torch.fft.rfft2(x.float(), dim=axes))(Kp[:, None, :], axes=(-2, -1))
        Uf = (lambda x, axes=(-2,-1): torch.fft.rfft2(x.float(), dim=axes))(up[:, :, None, :], axes=(-2, -1))
        Yf = Uf * Kf[None, :, :, :]
        y = (lambda x, s, axes=(-2,-1): torch.fft.irfft2(x, s=s, dim=axes).to(torch.bfloat16))(Yf, (1, L2), axes=(-2, -1))[:, :, 0, :L]
        y = (lambda x, *d: x.permute(*d))(y, 0, 2, 1) + u * Dskip[None, None, :]
        return y

    def _B_ref(x, w_gate, w_up, w_down):
        return (_gelu(x @ w_gate) * (x @ w_up)) @ w_down

    x = A_u
    x = x + _A_ref(_layernorm(x, axis=-1), A_A_re, A_A_im, A_B_re, A_B_im, A_C_re, A_C_im, A_log_dt, A_Dskip)
    x = x + _B_ref(_layernorm(x, axis=-1), B_w_gate, B_w_up, B_w_down)
    x = x + _A_ref(_layernorm(x, axis=-1), A_A_re, A_A_im, A_B_re, A_B_im, A_C_re, A_C_im, A_log_dt, A_Dskip)
    x = x + _B_ref(_layernorm(x, axis=-1), B_w_gate, B_w_up, B_w_down)
    return x
```

```python
HDR='''; @launch grid=(%d,1,1) block=(%d,1,1) lds=%d
.amdgcn_target "amdgcn-amd-amdhsa--gfx950"
.text
.globl mb_kernel
.p2align 8
.type mb_kernel,@function
mb_kernel:
'''
FTR='''s_endpgm
.section .rodata,"a"
.p2align 6
.amdhsa_kernel mb_kernel
  .amdhsa_next_free_vgpr %d
  .amdhsa_next_free_sgpr 102
  .amdhsa_accum_offset %d
  .amdhsa_group_segment_fixed_size 0
  .amdhsa_kernarg_size 8
  .amdhsa_user_sgpr_count 2
  .amdhsa_user_sgpr_kernarg_segment_ptr 1
  .amdhsa_system_sgpr_workgroup_id_x 1
.end_amdhsa_kernel
'''
def gen(name, bodyP, bodyQ=None, iters=64, nm=32):
    blk=512 if bodyQ else 256
    s=HDR%(256,blk,131072)
    s+='''s_load_dwordx2 s[4:5], s[0:1], 0
v_lshrrev_b32 v1, 6, v0
s_nop 1
v_readfirstlane_b32 s8, v1
v_and_b32 v2, 63, v0
v_lshlrev_b32 v3, 3, v2
v_lshlrev_b32 v4, 4, v2
s_waitcnt lgkmcnt(0)
'''
    for r in range(8,128): s+=f'v_mov_b32 v{r}, 0\n'
    for r in range(0,128): s+=f'v_accvgpr_write_b32 a{r}, 0\n'
    s+='s_barrier\ns_memtime s[10:11]\ns_waitcnt lgkmcnt(0)\ns_mov_b32 s9, 0\n'
    if bodyQ:
        s+='s_cmp_ge_u32 s8, 4\ns_cbranch_scc1 LQ\n'
    s+='.p2align 6\nLP:\n'+bodyP+f's_add_u32 s9, s9, 1\ns_cmp_lt_u32 s9, {iters}\ns_cbranch_scc1 LP\ns_branch LE\n'
    if bodyQ:
        s+='.p2align 6\nLQ:\n'+bodyQ+f's_add_u32 s9, s9, 1\ns_cmp_lt_u32 s9, {iters}\ns_cbranch_scc1 LQ\n'
    s+=f'''LE:
s_waitcnt lgkmcnt(0) vmcnt(0)
s_memtime s[12:13]
s_waitcnt lgkmcnt(0)
s_sub_u32 s12, s12, s10
s_cmp_lg_u32 s2, 0
s_cbranch_scc1 LX
v_mov_b32 v5, s12
v_cvt_f32_u32 v5, v5
v_mul_f32 v5, {100.0/(iters*nm)}, v5
v_cvt_u32_f32 v5, v5
v_lshlrev_b32 v6, 2, v1
global_store_dword v6, v5, s[4:5]
s_waitcnt vmcnt(0)
LX:
'''
    s+=FTR%(256,128)
    open(name,'w').write(s)
def body(ntr=0,nb128=0,ndot=0,nplain=0,ntrans=0,npk=0,mfma=True,barrier=False,nm=32):
    s=''
    acc=dict(tr=0.,b=0.,d=0.,p=0.,t=0.,k=0.)
    cnt=0
    for i in range(nm):
        b=8+(i%4)*4
        nb=8+((i+2)%4)*4
        if mfma:
            if ntr>=1 or nb128>=1: s+=f's_waitcnt lgkmcnt({2 if ntr>=1 else 1})\n'
            s+=f'v_mfma_f32_32x32x16_bf16 v[32:47], a[{(i%32)*4}:{(i%32)*4+3}], v[{b}:{b+3}], v[32:47]\n'
        acc['tr']+=ntr; acc['b']+=nb128; acc['d']+=ndot; acc['p']+=nplain; acc['t']+=ntrans; acc['k']+=npk
        j=0
        while acc['tr']>=1:
            s+=f'ds_read_b64_tr_b16 v[{nb+2*(j%2)}:{nb+2*(j%2)+1}], v3 offset:{(i*1024+j*512)%65536}\n'; acc['tr']-=1; j+=1
        while acc['b']>=1:
            s+=f'ds_read_b128 v[{nb}:{nb+3}], v4 offset:{(i*1024)%65536}\n'; acc['b']-=1
        while acc['d']>=1:
            cnt+=1; s+=f'v_dot2_f32_bf16 v{48+cnt%4}, v{24+cnt%4}, v{24+cnt%4}, v{48+cnt%4}\n'; acc['d']-=1
        while acc['t']>=1:
            cnt+=1; s+=f'v_exp_f32 v{56+cnt%8}, v{64+cnt%8}\n'; acc['t']-=1
        while acc['p']>=1:
            cnt+=1; s+=f'v_fma_f32 v{72+cnt%8}, v{80+cnt%8}, v{88+cnt%8}, v{72+cnt%8}\n'; acc['p']-=1
        while acc['k']>=1:
            cnt+=1; c=(cnt%4)*2; s+=f'v_pk_fma_f32 v[{96+c}:{97+c}], v[{104+c}:{105+c}], v[{112+c}:{113+c}], v[{96+c}:{97+c}]\n'; acc['k']-=1
    if barrier: s+='s_waitcnt lgkmcnt(0)\ns_barrier\n'
    return s
gen('i0.s',body())
gen('i1.s',body(ntr=2))
gen('i2.s',body(ntr=2,nplain=1.75,ntrans=0.5))
gen('i3.s',body(ntr=2,nplain=2.5,ntrans=0.5,ndot=2))
gen('i4.s',body(nb128=1,nplain=2.5,ntrans=0.5))
gen('i5.s',body(ntr=2,npk=0.75,nplain=0.25,ntrans=0.5))
gen('i6.s',body(ntr=2,ndot=2))
gen('i7.s',body(ntr=2,nplain=2.25,ntrans=0.5,barrier=True),body(ntr=0.5,ndot=2,nplain=1,mfma=False,barrier=True))
gen('i8.s',body(ntr=2,barrier=True),body(ntr=0.5,ndot=2,nplain=3,ntrans=0.5,mfma=False,barrier=True))
gen('i9.s',body(ntr=2,nplain=4.5,ntrans=0.5))
gen('i10.s',body(ntr=2,nplain=2.5,ntrans=0.5,ndot=1))
gen('j0.s',body(ntr=2,nplain=2.25,ntrans=0.5,barrier=True),body(ntr=0.5,nplain=6,mfma=False,barrier=True))
gen('j1.s',body(ntr=2,nplain=2.25,ntrans=0.5,barrier=True),body(ntr=0.5,nplain=4,mfma=False,barrier=True))
gen('j2.s',body(ntr=2,barrier=True),body(ntr=0.5,nplain=6,ntrans=0.5,mfma=False,barrier=True))
gen('j3.s',body(ndot=4,mfma=False))
gen('j4.s',body(nplain=4,mfma=False))
gen('j5.s',body(npk=4,mfma=False))
gen('j6.s',body(nplain=8,mfma=False),body(nplain=8,mfma=False))
gen('j7.s',body(ntrans=4,mfma=False),body(ntrans=4,mfma=False))
gen('j8.s',body(ntr=2,nplain=2.25,ntrans=0.5,barrier=True))
gen('j9.s',body(ntr=2,nplain=3,ntrans=0.5))
gen('j10.s',body(ntr=2,nplain=2.25,ntrans=0.5),body(nplain=1))
pr='s_setprio 2\n'
gen('k0.s',body(ntr=2,nplain=2.25,ntrans=0.5,barrier=True),pr+body(ntr=0.5,nplain=6,mfma=False,barrier=True))
gen('k1.s',body(ntr=2,nplain=2.25,ntrans=0.5,barrier=True),pr+body(ntr=0.5,nplain=4,mfma=False,barrier=True))
gen('k2.s',body(ntr=2,barrier=True),pr+body(ntr=0.5,nplain=6,ntrans=0.5,mfma=False,barrier=True))
gen('k3.s',body(ntr=2,nplain=2.25,ntrans=0.5,barrier=True),pr+body(ntr=0.5,ndot=2,mfma=False,barrier=True))
gen('k4.s',body(ntr=2,nplain=2.25,ntrans=0.5,barrier=True),pr+body(ntr=0.5,nplain=2,npk=2,mfma=False,barrier=True))
gen('k5.s',body(ntr=2,nplain=2.25,ntrans=0.5)+body(ndot=8,mfma=False,nm=8))
gen('k6.s',body(ntr=2,nplain=2.25,ntrans=0.5)+body(ndot=4,mfma=False,nm=8))
gen('k7.s',body(ntr=2,nplain=2.25,ntrans=0.5))
```

```python
from mb_issue import HDR,FTR
def gen(name,nbytes,grid,blk):
    s=HDR%(grid,blk,131072)
    s+='''s_load_dwordx2 s[4:5], s[0:1], 0
v_lshrrev_b32 v1, 6, v0
s_mov_b32 s9, 0
s_waitcnt lgkmcnt(0)
LP:
s_memtime s[10:11]
s_waitcnt lgkmcnt(0)
'''
    for i in range(nbytes//8): s+=f'v_fma_f32 v{8+i%8}, v20, v21, v22\n'
    s+=f'''s_memtime s[12:13]
s_waitcnt lgkmcnt(0)
s_sub_u32 s12, s12, s10
v_mov_b32 v5, s12
s_lshl_b32 s14, s2, 4
s_lshl_b32 s15, s9, 2
s_add_u32 s14, s14, s15
v_mov_b32 v6, s14
global_store_dword v6, v5, s[4:5]
s_add_u32 s9, s9, 1
s_cmp_lt_u32 s9, 3
s_cbranch_scc1 LP
s_waitcnt vmcnt(0)
'''
    s+=FTR%(256,128)
    open(name,'w').write(s)
gen('c0.s',16384,256,256)
gen('c1.s',16384,4,64)
gen('c2.s',4096,256,256)
```

```python
from common import *
import os
OPT=dict((x.split('=')+[1])[:2] for x in os.environ.get('OPT','').split(',') if x)
def opt(k,d): return int(OPT.get(k,d))
X1=[0,10*MB]; X2=2*MB; ST1=4*MB; HB=[4*MB+131072,12*MB]; F1=2*MB; F2=10*MB
ST0=20*MB; PF=ST0+65536; NONCE=ST0+131072
class E(Asm):
    def __init__(s): super().__init__(); s.lg=[]; s.vq=[]
    def lw(s,tags):
        idx=[i for i,t in enumerate(s.lg) if t in tags]
        if not idx: return
        n=min(len(s.lg)-1-max(idx),15); s(f's_waitcnt lgkmcnt({n})'); s.lg=s.lg[len(s.lg)-n:] if n else []
    def vw(s,tags):
        idx=[i for i,t in enumerate(s.vq) if t in tags]
        if not idx: return
        n=len(s.vq)-1-max(idx); assert n<63; s(f's_waitcnt vmcnt({n})'); s.vq=s.vq[len(s.vq)-n:] if n else []
    def lall(s): s('s_waitcnt lgkmcnt(0)'); s.lg=[]
    def put(s,x):
        if isinstance(x,str): s(x)
        elif isinstance(x,list):
            for y in x: s.put(y)
        elif x[0]=='ds': s(x[1]); s.lg.append(x[2])
        elif x[0]=='vm': s(x[1]); s.vq.append(x[2])
        elif x[0]=='lw': s.lw(x[1])
        elif x[0]=='vw': s.vw(x[1])
        elif x[0]=='bar': s.lw(x[1]); s('s_barrier')
        elif x[0]=='fn': x[1]()
        else: raise Exception(x)
def spread(G,items,g0,g1,cap=None):
    gs=list(range(g0,g1)); w=[(cap[g] if cap else 1) for g in gs]; tot=sum(w); acc=0; k=0
    for g,x in zip(gs,w):
        acc+=x; e=len(items) if g==gs[-1] else int(round(acc/tot*len(items)))
        G.setdefault(g,[]).extend(items[k:e]); k=e
def mix(base,extra,first=0,last=None):
    last=len(base) if last is None else last
    G={}; spread(G,extra,first,last); o=[]
    for i,x in enumerate(base): o+=G.get(i,[]); o.append(x)
    return o
def pipe(A,mf,frag,slots,per,G,pre=0):
    order=[]; last={}
    for i,(a,b,_) in enumerate(mf):
        for f in (a,b):
            if f not in last: order.append(f)
            last[f]=i
    free=list(slots); where={}; pend=[]
    def issue(k):
        n=0
        while n<k:
            if not pend:
                if not order or not free: return
                f=order.pop(0); where[f]=free.pop(0); pend.extend((t,f) for t in frag(f,where[f]))
            t,f=pend.pop(0); A.put(('ds',t,f)); n+=1
    issue(pre)
    for i,(a,b,fmt) in enumerate(mf):
        while a not in where or b not in where or any(f in (a,b) for _,f in pend): issue(1)
        A.lw([a,b])
        A(fmt.format(a=vr(where[a],4),b=vr(where[b],4)))
        for f in (a,b):
            if last[f]==i: free.append(where[f])
        if len(A.lg)<12: issue(per)
        A.put(G.get(i,[]))
def unpack(src,dst,n):
    o=[]
    for k in range(n): o+=[f'v_and_b32 v{dst+2*k+1}, 0xffff0000, v{src+k}', f'v_lshlrev_b32 v{dst+2*k}, 16, v{src+k}']
    return o
def pack(src,dst,n): return [f'v_cvt_pk_bf16_f32 v{dst+k}, v{src+2*k}, v{src+2*k+1}' for k in range(n)]
def rnd(r,n): return [f'v_cvt_pk_bf16_f32 v{r+k}, 0, v{r+k}' for k in range(n)]
def addv(d,a,b,n,pk):
    if pk: return [f'v_pk_add_f32 {vr(d+k,2)}, {vr(a+k,2)}, {vr(b+k,2)}' for k in range(0,n,2)]
    return [f'v_add_f32 v{d+k}, v{a+k}, v{b+k}' for k in range(n)]
def trd(reg,addr,off,tag): return [('ds',f'ds_read_b64_tr_b16 {vr(reg,2)}, v{addr} offset:{off}',tag), ('ds',f'ds_read_b64_tr_b16 {vr(reg+2,2)}, v{addr} offset:{off+256}',tag)]
```

```python
import struct
NAME='interleave_layers__ssm_conv_s4__geglu_ffn__prompt'
MB=1<<20
WS_X0=0
WS_X2=2*MB
WS_X1=4*MB
HSZ=64*88*1024
WS_H=8*MB
WS_ST1=WS_H+2*HSZ
FILL_LO=WS_X2; FILL_HI=WS_ST1+131072
WS_ST0=20*MB
WS_KT=21*MB; KTS=33792; KC=4160
WS_W1=30*MB
WS_W2=34*MB
WS_DBG=40*MB
WS_SIZE=48*MB
def f2u(x): return struct.unpack('<I',struct.pack('<f',x))[0]
def hx(x): return '0x%08x'%(x&0xffffffff)
def F(x): return hx(f2u(x))
class Asm:
    def __init__(s): s.l=[]
    def __call__(s,t):
        for x in t.strip('\n').split('\n'):
            x=x.strip()
            if x: s.l.append(x)
    def text(s): return '\n'.join(('' if x.endswith(':') else '  ')+x for x in s.l)+'\n'
def vr(a,n=1,k='v'): return f'{k}{a}' if n==1 else f'{k}[{a}:{a+n-1}]'
def ar(a,n=1): return vr(a,n,'a')
def srd(A,d,b,size,off=0):
    if off:
        A(f's_add_u32 s{d}, s{b}, {hx(off)}\ns_addc_u32 s{d+1}, s{b+1}, 0')
    else:
        A(f's_mov_b32 s{d}, s{b}\ns_mov_b32 s{d+1}, s{b+1}')
    A(f's_mov_b32 s{d+2}, {hx(size)}\ns_mov_b32 s{d+3}, 0x00020000')
def desc(name,vg,acc):
    return f'''.amdhsa_kernel {name}
  .amdhsa_next_free_vgpr {vg}
  .amdhsa_next_free_sgpr 102
  .amdhsa_accum_offset {acc}
  .amdhsa_group_segment_fixed_size 0
  .amdhsa_kernarg_size 128
  .amdhsa_user_sgpr_count 2
  .amdhsa_user_sgpr_kernarg_segment_ptr 1
  .amdhsa_system_sgpr_workgroup_id_x 1
.end_amdhsa_kernel
'''
```

```python
import re
def regs(tok):
    tok=tok.strip().lstrip('-|').rstrip('|')
    m=re.fullmatch(r'([vas])(\d+)',tok)
    if m: return {(m[1],int(m[2]))}
    m=re.fullmatch(r'([vas])\[(\d+):(\d+)\]',tok)
    if m: return {(m[1],i) for i in range(int(m[2]),int(m[3])+1)}
    if tok in('vcc','m0','exec'): return {(tok,0)}
    return set()
TR=('v_exp_','v_rcp_','v_sqrt_','v_rsq_','v_sin_','v_cos_','v_log_')
def parse(l):
    p=l.split(None,1); op=p[0]; a=[x.strip() for x in p[1].split(',')] if len(p)>1 else []
    if a: a[-1]=a[-1].split()[0] if a[-1] else a[-1]
    a=[x.split()[0] for x in a if x]
    R=[regs(x) for x in a]; U=lambda x:set().union(*x) if x else set()
    d=dict(op=op,w=set(),r=set(),n=1,k='o',dpp='_dpp' in op)
    if op=='s_nop': d['n']=int(a[0])+1
    elif op.startswith('v_mfma'):
        d.update(k='m',w=R[0],ab=R[1]|R[2],c=R[3],r=U(R[1:]),p=8 if '32x32' in op else 4 if '16x16' in op else 2)
    elif op.startswith('v_permlane'): d.update(k='v',w=U(R),r=U(R))
    elif op.startswith('v_'):
        d.update(k='v',w=R[0],r=U(R[1:]))
        if op.startswith(('v_fmac','v_writelane')) or 'dpp' in op: d['r']|=R[0]
    elif op.startswith('ds_read'): d.update(k='d',w=R[0],r=U(R[1:]))
    elif op.startswith('ds_'): d.update(k='d',r=U(R))
    elif op.startswith(('buffer_load','global_load')):
        if ' lds' in l: d.update(k='b',r=U(R)|{('m0',0)})
        else: d.update(k='b',w=R[0],r=U(R[1:]))
    elif op.startswith(('buffer_store','global_store')): d.update(k='b',r=U(R),sd=R[0] if 'x4' in op else set())
    elif op.startswith('s_') and R and not op.startswith(('s_cmp','s_bitcmp','s_setpc','s_waitcnt')): d.update(k='s',w=R[0],r=U(R[1:]))
    return d
def check(lines):
    I=[(n,l,parse(l)) for n,l in enumerate(lines) if not l.endswith(':') and not l.startswith('.')]
    bad=0
    for i,(n,l,a) in enumerate(I):
        dist=0; tm=a['p'] if a['k']=='m' else 0
        for j in range(i+1,min(i+22,len(I))):
            b=I[j][2]; need=0
            if a['k']=='m':
                t={2:0,4:1,8:2}[a['p']]
                if b['k']=='m':
                    if a['w']&b['ab']: need=(5,8,12)[t]
                    elif a['w']&b['c']: need=((2,0,0)[t] if (a['w']==b['c'] and a['p']==b['p']) else (4,6,10)[t])
                    elif a['w']&b['w']: need=(4,6,10)[t]
                elif a['w']&(b['r']|b['w']): need=(5,8,12)[t]
                elif b['k']=='v' and a['c']&b['w']: need=(1,3,7)[t]
            elif a['k']=='v':
                vw={x for x in a['w'] if x[0] in 'va' and x[0]!='vcc'}; sw=a['w']-vw
                if b['k']=='m' and vw&b['r']: need=2
                if b['k']=='v' and vw&b['r']:
                    if a['op'].startswith(TR) and not b['op'].startswith(TR): need=max(need,1)
                    if b['dpp'] or 'permlane' in b['op']: need=max(need,2)
                    if 'readlane' in b['op'] or 'readfirst' in b['op']: need=max(need,1)
                if a['op'].startswith('v_dot') and vw&(b['r']|b['w']) and b['op']!=a['op']: need=max(need,3)
                if sw&b['r']:
                    if b['k']=='v': need=max(need,2)
                    if b['k']=='b': need=max(need,5)
            elif a['k']=='b' and a.get('sd') and b['k'] in 'vm' and a['sd']&b['w']: need=2
            elif a['k']=='s' and ('m0',0) in a['w'] and b['k']=='b' and ('m0',0) in b['r']: need=1
            if need>dist:
                bad+=1; print(f'HAZARD need {need} have {dist}: [{n}] {l}  ->  [{I[j][0]}] {I[j][1]}')
            if b['k']=='m' and tm: dist=max(dist,tm-1); tm=dist+1+b['p']
            dist+=b['n']
            if b['op'] in('s_branch','s_endpgm','s_setpc_b64'): break
    return bad
if __name__=='__main__':
    import sys
    L=[x.strip() for x in open(sys.argv[1]) if x.strip() and not x.strip().startswith(';')]
    print('hazards',check(L))
```

```python
from c2 import *
import math, ka
LOG2E=math.log2(math.e)
XB=0; L_KT=98304; L_U=L_KT+KTS; UCH=4608; L_SX=L_U+2*UCH; L_XT=L_SX+2048; LDS_B=L_XT+4096
L_Y=65536; YW=5120; RW=8704; L_PK=ka.LDS_A
vKA,vUB,vCX,vCS,vCS1,vUW,vYW,vYR,vLN,vSW,vSR,vD,vRW,vRR,vOUT,vXW,vXT,vXL,vL4,vRA=range(1,21)
vON=22; vQ=24; vQ2=28
ACC=32; T=64; OWN=84; RING=116; STA=140; MF=156; SRD_=160; WX=204; W1V=208
HQ=[168+4*k for k in range(9)]+[STA+4*k for k in range(4)]+[OWN+4*k for k in range(8)]+[SRD_]
CQ=HQ[:17]; SLOTS=[r for r in range(84,204,4) if r not in CQ]
RS,WREG,L1=ka.RS,ka.WREG,ka.L1
def fills(base,n,vt,tag):
    o=[]
    for i in range(n): o.append([f's_add_u32 s97, s58, {hx(base+i*MB)}',('vm',f'buffer_store_dwordx4 {vr(vt,4)}, v{vXW}, s[8:11], s97 offen sc1',tag)])
    return o
def tick(A): A('s_sub_u32 s39, s39, 1\ns_cselect_b32 s56, 0, s56\ns_cselect_b32 s57, 0, s57')
def prologue(A,ts,tail):
    A('''s_cmp_ge_u32 s2, 256
s_cbranch_scc1 B_end
s_load_dwordx16 s[12:27], s[0:1], 0
s_load_dwordx16 s[68:83], s[0:1], 64
s_getpc_b64 s[84:85]
B_pc:
s_lshr_b32 s4, s2, 3
v_lshlrev_b32 v32, 6, v0
s_and_b32 s5, s4, 3
s_lshl_b32 s5, s5, 14
v_add_u32 v32, s5, v32
v_min_u32 v32, B_end-B_pc, v32
v_mov_b32 v33, s85
v_add_co_u32 v32, vcc, s84, v32
v_lshrrev_b32 v34, 6, v0
v_and_b32 v35, 63, v0
v_addc_co_u32 v33, vcc, 0, v33, vcc
v_readfirstlane_b32 s6, v34''')
    A.put(('vm','global_load_dword v63, v[32:33], off','pf'))
    A(f'''s_and_b32 s3, s2, 7
s_lshl_b32 s5, s3, 5
s_add_u32 s5, s5, s4
s_lshl_b32 s58, s2, 12
v_lshlrev_b32 v{vLN}, 4, v35
v_lshlrev_b32 v{vXW}, 4, v0
v_mov_b32 v200, -1
v_mov_b32 v201, -1
v_mov_b32 v202, -1
v_mov_b32 v203, -1
v_lshl_add_u32 v36, v34, 11, v{vLN}
s_lshl_b32 s3, s2, 13
s_waitcnt lgkmcnt(0)''')
    srd(A,8,82,WS_SIZE); srd(A,28,12,2*MB)
    A(f's_add_u32 s70, s82, {hx(NONCE)}\ns_addc_u32 s71, s83, 0\ns_load_dwordx2 s[98:99], s[70:71], 0')
    A.put(fills(X1[0],2,200,'f0'))
    A.put([('vm','buffer_load_dwordx4 v[40:43], v36, s[28:31], s3 offen','xr'),('vm','buffer_load_dwordx4 v[44:47], v36, s[28:31], s3 offen offset:1024','xr')])
    A('s_mov_b32 s35, 0x00020000\ns_cmp_ge_u32 s2, 176\ns_cbranch_scc1 P_w2ld')
    A('''s_lshr_b32 s59, s2, 1
s_and_b32 s7, s2, 1
s_mul_i32 s3, s7, 704512
s_lshl_b32 s4, s59, 5
s_add_u32 s3, s3, s4
s_add_u32 s4, s3, 352256
v_lshrrev_b32 v37, 1, v0
s_movk_i32 s34, 2752
v_and_b32 v38, 1, v0
v_lshlrev_b32 v38, 4, v38
v_mad_u32_u24 v39, v37, s34, v38
s_mov_b32 s34, 1409024
s_mov_b32 s32, s72
s_mov_b32 s33, s73
buffer_load_dwordx4 v[84:87], v39, s[32:35], s3 offen
buffer_load_dwordx4 v[92:95], v39, s[32:35], s4 offen
s_mov_b32 s32, s74
s_mov_b32 s33, s75
buffer_load_dwordx4 v[88:91], v39, s[32:35], s3 offen
buffer_load_dwordx4 v[96:99], v39, s[32:35], s4 offen
s_branch P_ldd
P_w2ld:
s_sub_u32 s59, s2, 176
s_lshl_b32 s3, s59, 15
s_mov_b32 s34, 1409024
s_mov_b32 s32, s76
s_mov_b32 s33, s77''')
    for i in range(8): A(f'buffer_load_dwordx4 {vr(84+4*i,4)}, v{vXW}, s[32:35], s3 offen\ns_add_u32 s3, s3, 4096')
    A('P_ldd:'); A.vq+=['pk']*4
    A(f's_lshl_b32 s3, s5, 9\nv_lshlrev_b32 v55, 1, v0\ns_mov_b32 s34, 131072\nv_lshrrev_b32 v56, 7, v0\nv_and_b32 v57, 1, v0\nv_mov_b32 v{vD}, 0')
    for i in range(6):
        A(f's_mov_b32 s32, s{14+2*i}\ns_mov_b32 s33, s{15+2*i}'); A.put(('vm',f'buffer_load_ushort v{48+i}, v55, s[32:35], s3 offen','par'))
    A('s_lshl_b32 s3, s5, 2\nv_lshlrev_b32 v58, 1, v56\nv_lshlrev_b32 v59, 1, v57\ns_mov_b32 s34, 1024\ns_mov_b32 s32, s26\ns_mov_b32 s33, s27')
    A.put(('vm','buffer_load_ushort v54, v58, s[32:35], s3 offen','par'))
    A('s_mov_b32 s32, s68\ns_mov_b32 s33, s69'); A.put(('vm',f'buffer_load_short_d16_hi v{vD}, v59, s[32:35], s3 offen','par'))
    A('v_lshlrev_b32 v58, 12, v0\ns_add_u32 s4, s3, 0x100000')
    for h in range(2):
        for k in range(4): A.put(('vm',f'buffer_load_dword v{192+4*h+k}, v58, s[28:31], s{3+h} offen offset:{1024*k}','ga'))
    srd(A,16,78,2*MB); srd(A,20,82,0); srd(A,24,82,0)
    A(f'''s_lshr_b32 s52, s5, 3
s_and_b32 s53, s5, 7
s_lshl_b32 s36, s5, 7
s_lshl_b32 s60, s6, 13
s_mov_b32 s22, {hx(WS_SIZE)}
s_cmp_lt_u32 s5, 132
s_cbranch_scc0 B_m2
s_mul_i32 s41, s5, 171
s_lshr_b32 s41, s41, 10
s_mul_i32 s3, s41, 6
s_sub_u32 s40, s5, s3
s_branch B_m3
B_m2:
s_sub_u32 s4, s5, 132
s_cmp_ge_u32 s4, 110
s_cselect_b32 s22, 0, s22
s_cselect_b32 s3, 14, 0
s_sub_u32 s4, s4, s3
s_mul_i32 s41, s4, 205
s_lshr_b32 s41, s41, 10
s_mul_i32 s3, s41, 5
s_sub_u32 s40, s4, s3
s_add_u32 s40, s40, 6
B_m3:
s_lshl_b32 s38, s41, 2
s_add_u32 s38, s38, s6
s_cmp_eq_u32 s40, 10
s_cselect_b32 s26, 0, s22
s_cselect_b32 s42, 21, 22
s_add_u32 s42, s42, s40
s_add_u32 s41, s40, 11
s_lshl_b32 s3, s38, 10''')
    for s in range(3): A(f's_mul_i32 s{43+s}, s{40+s}, {88*1024}\ns_add_u32 s{43+s}, s{43+s}, s3\ns_lshl_b32 s{40+s}, s{40+s}, 15\ns_add_u32 s{40+s}, s{40+s}, s60')
    A(f'''s_mul_i32 s61, s38, {33*1024}
s_add_u32 s61, s61, {hx(WS_W1)}
s_mul_i32 s46, s52, {88*1024}
s_mul_i32 s3, s6, {22*1024}
s_add_u32 s46, s46, s3
s_lshl_b32 s3, s3, 1
s_mul_i32 s55, s53, {88*2048}
s_add_u32 s55, s55, s3
s_lshl_b32 s3, s52, 15
s_lshl_b32 s4, s53, 12
s_add_u32 s47, s3, s4
s_lshl_b32 s4, s53, 7
s_add_u32 s51, s3, s4
s_lshl_b32 s3, s52, 8
s_lshl_b32 s4, s53, 14
s_add_u32 s50, s3, s4
s_mov_b32 s39, 0x8000
s_mov_b64 s[56:57], -1
s_mov_b32 s62, 0xaaaaaaaa
s_mov_b32 s63, 0xaaaaaaaa
s_mov_b32 s64, 0xcccccccc
s_mov_b32 s65, 0xcccccccc
s_lshl_b32 s4, s6, 4
s_mov_b64 s[82:83], 0xffff
s_lshl_b64 s[82:83], s[82:83], s4''')
    for i in range(4): A(f's_add_u32 s3, s6, {i}\ns_and_b32 s3, s3, 3\ns_lshl_b32 s{66+i}, s3, 13')
    A(f'''v_lshrrev_b32 v64, 3, v0
v_and_b32 v65, 7, v0
v_bfe_u32 v66, v0, 1, 2
v_lshlrev_b32 v{vCX}, 15, v64
v_lshl_add_u32 v{vCX}, v57, 6, v{vCX}
v_lshl_add_u32 v{vCX}, v66, 4, v{vCX}
v_lshlrev_b32 v{vCS}, 8, v64
v_lshl_add_u32 v{vCS}, v65, 4, v{vCS}
v_add_u32 v{vCS1}, 0x2000, v{vCS}
v_and_b32 v67, 15, v0
v_bfe_u32 v68, v0, 4, 2
v_and_b32 v70, 1, v34
v_sub_u32 v71, 3, v67
v_and_b32 v71, 3, v71
v_lshl_add_u32 v72, v56, 2, v71
s_movk_i32 s3, {KC}
v_mul_lo_u32 v72, v72, s3
v_add_u32 v71, v71, v67
v_lshlrev_b32 v71, 1, v71
v_sub_u32 v72, v72, v71
v_lshl_add_u32 v72, v68, 4, v72
v_lshlrev_b32 v71, 8, v70
v_sub_u32 v72, v72, v71
v_add_u32 v{vKA}, {L_KT+2*2031-192-3584}, v72
s_movk_i32 s3, {UCH}
v_mul_lo_u32 v72, v56, s3
v_lshl_add_u32 v72, v67, 5, v72
v_lshl_add_u32 v72, v68, 4, v72
v_sub_u32 v72, v72, v71
v_add_u32 v{vUB}, {L_U+480-192}, v72
v_mul_lo_u32 v72, v57, s3
v_lshl_add_u32 v72, v64, 6, v72
v_lshl_add_u32 v72, v66, 4, v72
v_add_u32 v{vUW}, {L_U+512}, v72
s_movk_i32 s3, {YW}
v_mul_lo_u32 v72, v34, s3
v_lshl_add_u32 v72, v68, 4, v72
s_movk_i32 s4, 80
v_mad_u32_u24 v72, v67, s4, v72
v_add_u32 v{vYW}, {L_Y}, v72
v_lshlrev_b32 v72, 1, v57
v_mul_lo_u32 v72, v72, s3
v_lshrrev_b32 v73, 2, v0
v_mad_u32_u24 v72, v73, s4, v72
v_and_b32 v73, 1, v66
v_lshl_add_u32 v72, v73, 5, v72
v_add_u32 v{vYR}, {L_Y}, v72
v_bfe_u32 v76, v0, 2, 2
v_bfe_u32 v77, v0, 5, 1
v_lshl_add_u32 v72, v77, 3, v76
v_lshlrev_b32 v72, 6, v72
v_and_b32 v78, 1, v68
v_lshl_add_u32 v72, v78, 5, v72
v_and_b32 v79, 3, v0
v_lshl_add_u32 v80, v79, 3, v72
v_add_u32 v{vXL}, {L_XT}, v80
v_add_u32 v{vXT}, {L_XT}, v{vXW}
v_and_b32 v81, 31, v0
v_lshlrev_b32 v72, 5, v81
v_add_u32 v{vSR}, {L_SX}, v72
v_lshl_add_u32 v72, v77, 4, v{vSR}
v_lshl_add_u32 v{vSW}, v34, 2, v72
s_movk_i32 s3, {RW}
v_mad_u32_u24 v{vRW}, v34, s3, v{vLN}
v_lshl_add_u32 v72, v56, 2, v79
s_movk_i32 s3, 1088
v_lshrrev_b32 v73, 2, v35
v_lshl_add_u32 v73, v70, 4, v73
v_lshlrev_b32 v73, 4, v73
v_mad_u32_u24 v{vRR}, v72, s3, v73
v_lshlrev_b32 v72, 10, v81
v_lshl_add_u32 v72, v34, 5, v72
v_lshl_add_u32 v{vOUT}, v77, 4, v72
v_lshlrev_b32 v{vL4}, 2, v35
v_mov_b32 v{vON}, 0x3f803f80
v_mov_b32 v{vON+1}, 0x3f803f80''')
    for i in range(4): A(f'v_add_u32 v{vQ+i}, s{66+i}, v80\nv_add_u32 v{vQ2+i}, 0x10000, v{vQ+i}')
    A(f'''v_mov_b32 v116, 0
v_mov_b32 v117, 0
v_mov_b32 v120, 0
v_mov_b32 v121, 0
v_and_b32 v72, 127, v0
s_movk_i32 s3, {UCH}
v_mul_lo_u32 v73, v56, s3
v_lshl_add_u32 v73, v72, 2, v73
v_add_u32 v73, {L_U}, v73
ds_write_b32 v73, v116
v_lshrrev_b32 v73, 4, v72
s_movk_i32 s3, {KC}
v_lshlrev_b32 v74, 2, v67
v_mad_u32_u24 v73, v73, s3, v74
v_add_u32 v73, {L_KT+4096}, v73
ds_write_b32 v73, v116
s_waitcnt lgkmcnt(0)
s_add_u32 s72, s98, 1
s_not_b32 s73, s99
v_mov_b32 v118, s72
v_mov_b32 v119, s73
v_mov_b32 v122, s72
v_mov_b32 v123, s73
s_lshr_b32 s3, s2, 7
s_lshl_b32 s3, s3, 14
s_and_b32 s4, s2, 127
s_lshl_b32 s4, s4, 5
s_add_u32 s3, s3, s4
s_add_u32 s3, s3, {hx(ST0)}
s_add_u32 s4, s3, 4096
v_lshlrev_b32 v73, 13, v70
v_lshl_add_u32 v73, v56, 4, v73''')
    ts(); A.vw(['xr']); ts()
    for k in range(4):
        A(f'''v_dot2_f32_bf16 v116, v{40+k}, v{vON}, v116
v_dot2_f32_bf16 v120, v{44+k}, v{vON}, v120
v_dot2_f32_bf16 v117, v{40+k}, v{40+k}, v117
v_dot2_f32_bf16 v121, v{44+k}, v{44+k}, v121''')
    A('s_nop 2')
    for r in (116,120,117,121): A(f'v_mul_f32 v{r}, {F(1/512)}, v{r}')
    ka.wavesum(A,[116,120,117,121])
    A('s_mov_b32 exec_lo, 0\ns_brev_b32 exec_hi, 1')
    A.put([('vm','buffer_store_dwordx4 v[116:119], v73, s[8:11], s3 offen sc1','s0'),('vm','buffer_store_dwordx4 v[120:123], v73, s[8:11], s4 offen sc1','s0')])
    A('s_mov_b64 exec, -1')
    A.vw(['pk'])
    A(f'''s_cmp_ge_u32 s2, 176
s_cbranch_scc1 P_w2
v_lshl_add_u32 v39, v37, 6, v38
v_add_u32 v39, {L_PK}, v39
ds_write_b128 v39, v[84:87]
ds_write_b128 v39, v[88:91] offset:32
ds_write_b128 v39, v[92:95] offset:8192
ds_write_b128 v39, v[96:99] offset:8224
v_lshl_add_u32 v39, v34, 12, v80
v_add_u32 v39, {L_PK}, v39
s_mul_i32 s3, s59, {33*1024}
s_add_u32 s3, s3, {hx(WS_W1)}
s_lshl_b32 s4, s7, 14
s_add_u32 s4, s4, s3
v_lshl_add_u32 v38, v34, 12, v{vLN}
v_mov_b32 v100, 0
v_lshlrev_b32 v37, 2, v0
v_add_u32 v37, {L_SX}, v37
s_waitcnt lgkmcnt(0)
s_barrier''')
    for k in range(4): A.put(trd(84+4*k,39,1024*k,0))
    A.lall()
    for k in range(4): A(f'buffer_store_dwordx4 {vr(84+4*k,4)}, v38, s[8:11], s4 offen offset:{k*1024} sc1')
    for k in range(16): A(f'v_dot2_f32_bf16 v100, v{84+k}, v{vON}, v100')
    A(f'''v_lshlrev_b32 v38, 2, v81
v_add_u32 v38, {L_SX}, v38
s_lshl_b32 s4, s7, 9
ds_write_b32 v37, v100
s_add_u32 s3, s3, s4
s_add_u32 s3, s3, 32768
s_waitcnt lgkmcnt(0)
s_barrier''')
    for k in range(8): A(f'ds_read_b32 v{104+k}, v38 offset:{128*k}')
    A('v_mov_b32 v102, 0\nv_mov_b32 v103, 0\nv_cmp_gt_u32 vcc, 32, v0\ns_waitcnt lgkmcnt(0)')
    for k in range(1,8): A(f'v_add_f32 v104, v104, v{104+k}')
    A(f'''v_cvt_pk_bf16_f32 v105, 0, v104
v_sub_f32 v104, v104, v105
v_cvt_pk_bf16_f32 v100, v105, v104
v_and_b32 v105, 0xffff0000, v100
v_sub_f32 v104, v104, v105
v_cvt_pk_bf16_f32 v101, v104, 0
s_and_saveexec_b64 s[84:85], vcc
buffer_store_dwordx4 v[100:103], v{vLN}, s[8:11], s3 offen sc1
s_mov_b64 exec, -1
s_branch P_done
P_w2:
s_cmp_ge_u32 s2, 220
s_cbranch_scc1 P_done
s_movk_i32 s4, 1088
v_mad_u32_u24 v39, v34, s4, v{vLN}
v_add_u32 v39, {L_PK}, v39''')
    for i in range(8): A(f'ds_write_b128 v39, {vr(84+4*i,4)} offset:{i*4*1088}')
    A(f'''v_lshl_add_u32 v39, v77, 2, v76
v_lshlrev_b32 v38, 8, v34
v_lshl_add_u32 v38, v78, 5, v38
v_lshl_add_u32 v38, v79, 3, v38
v_mad_u32_u24 v39, v39, s4, v38
v_add_u32 v39, {L_PK}, v39
s_mov_b32 s4, {2*88*2048}
v_mul_lo_u32 v38, v34, s4
v_add_u32 v38, v38, v{vLN}
s_lshl_b32 s3, s59, 12
s_add_u32 s3, s3, {hx(WS_W2)}
s_add_u32 s4, s3, {88*2048}
s_waitcnt lgkmcnt(0)
s_barrier''')
    for u in range(2):
        for k in range(4):
            b=84+16*u+4*k; o=u*16*1088+64*k
            A(f'ds_read_b64_tr_b16 {vr(b,2)}, v39 offset:{o}\nds_read_b64_tr_b16 {vr(b+2,2)}, v39 offset:{o+8*1088}')
    for u in range(2):
        A(f's_waitcnt lgkmcnt({8-8*u})')
        for k in range(4): A(f'buffer_store_dwordx4 {vr(84+16*u+4*k,4)}, v38, s[8:11], s{3+(k>>1)} offen offset:{u*2048+(k&1)*1024} sc1')
    A('P_done:'); ts()
    A.vw(['par'])
    A.vq.append('pks')
    K=[]
    def cm(dr,xr,yr,t): return [f'v_mul_f32 v{t}, v{xr+1}, v{yr+1}',f'v_mul_f32 v{t+1}, v{xr+1}, v{yr}',f'v_fma_f32 v{dr+1}, v{xr}, v{yr+1}, v{t+1}',f'v_fma_f32 v{dr}, v{xr}, v{yr}, -v{t}']
    K+=[f's_movk_i32 s3, {WREG}','v_mul_lo_u32 v36, v34, s3',f'v_add_u32 v37, v36, v{vL4}']+[f'v_lshlrev_b32 v{48+i}, 16, v{48+i}' for i in range(7)]
    K+=[f'v_mul_f32 v54, {F(LOG2E)}, v54','v_exp_f32 v54, v54','s_nop 0','v_cvt_pk_bf16_f32 v54, 0, v54']+[f'v_mul_f32 v{48+i}, v54, v{48+i}' for i in range(4)]
    K+=cm(124,52,50,126)+[f'v_mul_f32 v48, {F(LOG2E)}, v48',f'v_mul_f32 v49, {F(1/(2*math.pi))}, v49']
    for r,l in ((130,1),(132,8),(134,256)):
        K+=[f'v_mul_f32 v126, {F(l)}, v48',f'v_mul_f32 v127, {F(l)}, v49','v_exp_f32 v126, v126','v_fract_f32 v127, v127',f'v_cos_f32 v{r}, v127',f'v_sin_f32 v{r+1}, v127','s_nop 0',f'v_mul_f32 v{r}, v126, v{r}',f'v_mul_f32 v{r+1}, v126, v{r+1}']
    reg={0:124}
    def wr_a(l): return [f'v_cvt_pk_bf16_f32 v128, v{reg[l]}, -v{reg[l]+1}',f'ds_write_b32 v37, v128 offset:{L1.index(l)*RS}']
    K+=wr_a(0)
    seq=[(l,l-1,130) for l in range(1,8)]+[(256,0,134),(258,2,134),(260,4,134),(262,6,134),(512,256,134),(516,260,134),(768,512,134),(772,516,134)]+[(l,l-256,134) for l in (1024,1280,1536,1792,2048)]
    slot={1:136,2:138,3:136,4:140,5:136,6:142,7:136,256:124,258:138,260:140,262:142,512:124,516:140,768:124,772:140,1024:124,1280:124,1536:124,1792:124,2048:124}
    K+=['v_mov_b32 v129, 0x3f80',f'ds_write_b32 v37, v129 offset:{25*RS}','v_mov_b32 v144, v132','v_mov_b32 v145, v133']
    for j in range(1,32):
        if j>1: K+=cm(144,144,132,146)
        K+=['v_cvt_pk_bf16_f32 v129, v144, v145',f'ds_write_b32 v37, v129 offset:{(25+j)*RS}']
        if j-1<len(seq):
            l,src,e=seq[j-1]; K+=cm(slot[l],reg[src],e,126); reg[l]=slot[l]; K+=wr_a(l)
    A.put(mix(K,fills(F1,8,200,'f1'),40))
    A(f's_movk_i32 s3, {RS}\nv_mad_u32_u24 v38, v81, s3, v36\nv_lshl_add_u32 v38, v77, 4, v38\ns_waitcnt lgkmcnt(0)')
    for k in range(8):
        A.put([('ds',f'ds_read_b128 {vr(84+8*k,4)}, v38 offset:{k*32}',k),('ds',f'ds_read_b128 {vr(88+8*k,4)}, v38 offset:{25*RS+k*32}',k)])
    X=['v_and_b32 v60, 127, v0','v_lshlrev_b32 v61, 4, v60','v_sub_u32 v61, 2047, v61',f's_movk_i32 s3, {2*WREG}','v_mul_lo_u32 v62, v56, s3','v_add_u32 v62, 16, v62']
    for k in range(19):
        r=148+k; X+=[f'v_subrev_u32 v{r}, {k}, v61',f'v_cvt_f32_i32 v{r}, v{r}',f'v_cvt_pk_bf16_f32 v{r}, 0, v{r}',f'v_cvt_i32_f32 v{r}, v{r}',f'v_ashrrev_i32 v59, 4, v{r}',f'v_add_u32 v{r}, v{r}, v59',f'v_lshl_add_u32 v{r}, v{r}, 2, v62']
    X+=['v_lshrrev_b32 v39, 1, v81','v_lshl_add_u32 v39, v81, 3, v39','v_lshl_add_u32 v39, v77, 2, v39','v_lshl_add_u32 v39, v39, 2, v36']+[f'v_mov_b32 v{64+k}, 0' for k in range(4)]
    G={}; spread(G,X,0,9)
    A.put(G[0])
    for k in range(8):
        A.lw([k]); A(f'v_mfma_f32_32x32x16_bf16 v[40:55], {vr(84+8*k,4)}, {vr(88+8*k,4)}, '+('0' if k==0 else 'v[40:55]')); A.put(G[k+1])
    A('ds_write_b128 v36, v[64:67]')
    for r in range(13):
        l=L1[8*(r//4)+r%4]; A(f'ds_write_b32 v39, v{40+r} offset:{16+4*(l+(l>>4))}')
    A.vw(['pks'])
    SQ=[84+4*k for k in range(4)]+CQ[9:13]
    def s0loads():
        for k in range(8): A(f's_mov_b32 s3, {hx(ST0+4096*k)}'); A.put(('vm',f'buffer_load_dwordx4 {vr(SQ[k],4)}, v{vXW}, s[8:11], s3 offen sc1','s0l'))
    A('s_waitcnt lgkmcnt(0)\ns_barrier')
    for k in range(19): A(f'ds_read_b32 v{116+k}, v{148+k} offset:{WREG}\nds_read_b32 v{64+k}, v{148+k}')
    A(f'''v_mov_b32 v40, s72
v_mov_b32 v41, s73
s_lshl_b32 s3, s2, 3
s_add_u32 s3, s3, {hx(PF)}
v_cmp_eq_u32 vcc, 0, v0
s_and_saveexec_b64 s[84:85], vcc
buffer_store_dwordx2 v[40:41], v0, s[8:11], s3 offen sc1
s_mov_b64 exec, -1''')
    s0loads()
    A(f's_movk_i32 s4, {4*KC}\nv_lshlrev_b32 v39, 5, v60\nv_mad_u32_u24 v39, v56, s4, v39\nv_add_u32 v39, {L_KT}, v39\ns_waitcnt lgkmcnt(0)')
    A.put(addv(64,64,116,20,True))
    for c in range(4):
        b=100+8*c
        for k in range(8): A(f'v_cvt_pk_bf16_f32 v{b+k}, v{64+2*k+c}, v{65+2*k+c}')
        A(f'ds_write_b128 v39, {vr(b,4)} offset:{c*KC}\nds_write_b128 v39, {vr(b+4,4)} offset:{c*KC+16}')
    A(f'''s_mul_i32 s3, s6, 11
s_add_u32 s3, s3, 174
s_lshl_b32 s4, s38, 1
v_min_u32 v40, 12, v35
v_add_u32 v41, s3, v40
v_add_u32 v40, s4, v40
v_cmp_gt_u32 vcc, 2, v35
v_mov_b32 v42, 0x05040100
v_mov_b32 v43, 0x07060302
v_cndmask_b32 v40, v41, v40, vcc
v_lshlrev_b32 v{vRA}, 3, v40
v_cndmask_b32 v44, v42, v43, s[62:63]
v_cndmask_b32 v45, v43, v42, s[62:63]''')
    for h in range(2):
        g=192+4*h; d=CQ[h]
        A(f'''v_perm_b32 v46, v{g+1}, v{g}, v45
v_perm_b32 v47, v{g+3}, v{g+2}, v45
v_perm_b32 v48, v{g+1}, v{g}, v44
v_perm_b32 v49, v{g+3}, v{g+2}, v44
v_mov_b32_dpp v46, v46 quad_perm:[1,0,3,2] row_mask:0xf bank_mask:0xf
v_mov_b32_dpp v47, v47 quad_perm:[1,0,3,2] row_mask:0xf bank_mask:0xf
v_cndmask_b32 v{d}, v48, v46, s[62:63]
v_cndmask_b32 v{d+1}, v49, v47, s[62:63]
v_cndmask_b32 v{d+2}, v46, v48, s[62:63]
v_cndmask_b32 v{d+3}, v47, v49, s[62:63]''')
    for ct in range(8): A(f's_mov_b32 s{28+ct}, {hx(ST1+16384*ct)}')
    ts()
    A('P_s0chk:'); A.vw(['s0l'])
    A(f'v_cmp_ne_u64 vcc, s[72:73], {vr(SQ[0]+2,2)}')
    for k in range(1,8): A(f'v_cmp_ne_u64 s[84:85], s[72:73], {vr(SQ[k]+2,2)}\ns_or_b64 vcc, vcc, s[84:85]')
    A('s_and_b64 vcc, vcc, s[56:57]\ns_cbranch_scc1 P_s0retry')
    def r():
        A('P_s0retry:'); tick(A); s0loads(); A('s_waitcnt vmcnt(0)\ns_branch P_s0chk')
    tail.append(r)
    return SQ
```

```python
from k2a import *
from kb import small, statfin
def w1(s): return ar(176+4*s,4) if s<20 else vr(W1V+4*(s-20),4)
def vm(t,tag): return ('vm',t,tag)
def cloads(h):
    o=[[f's_add_u32 s96, s36, {hx(X2+h*MB)}',vm(f'buffer_load_dwordx4 {vr(CQ[0],4)}, v{vCX}, s[8:11], s96 offen sc1','cl')]]
    for ct in range(8):
        for a in range(2): o.append(vm(f'buffer_load_dwordx4 {vr(CQ[1+2*ct+a],4)}, v{vCS1 if h else vCS}, s[8:11], s{28+ct} offen offset:{128*a} sc1','cl'))
    return o
def dma(L,n,tag=None):
    o=[]; c=X1[L]+(n//3)*MB
    for g in range(2):
        for k in range(4):
            x=vm(f'buffer_load_dwordx4 v{vLN}, s[8:11], s89 offen offset:{1024*k} sc1 lds',tag or ('d',n))
            if k==0: x=[f's_add_u32 m0, s60, {hx(32768*(n%3)+4096*g)}',f's_add_u32 s89, s{40+n%3}, {hx(c+4096*g)}',x]
            o.append(x)
    return o
def w1loads():
    o=[]
    for s in range(33):
        x=vm(f'buffer_load_dwordx4 {w1(s) if s<32 else vr(WX,4)}, v{vLN}, s[8:11], s95 offen offset:{1024*(s%4)} sc1',('w',s))
        if s==32: x=['s_add_u32 s95, s61, 32768',x]
        elif s%4==0: x=[f's_add_u32 s95, s61, s{66+s//8}' if s%8==0 else 's_add_u32 s95, s95, 4096',x]
        o.append(x)
    return o
def w2loads():
    o=[]
    for k in range(44):
        x=vm(f'buffer_load_dwordx4 {ar(4*k,4)}, v{vLN}, s[8:11], s95 offen offset:{1024*(k%4)} sc1','w2')
        if k%4==0: x=[f's_add_u32 s95, s55, {hx(WS_W2+1024*k)}',x]
        o.append(x)
    return o
def hloads(L,H):
    o=[]
    for k in range(22):
        x=vm(f'buffer_load_dwordx4 {vr(HQ[k],4)}, v{vLN}, s[8:11], s96 offen offset:{1024*(k%4)} sc1',('h',k))
        if k%4==0: x=[f's_add_u32 s96, s46, {hx(HB[L]+H*32*88*1024+1024*k)}',x]
        o.append(x)
    return o
def conv(A,L,SQ,ts,tail):
    X=T; UD=T+8; UP=T+16; t=ACC
    def prep(h):
        o=[]
        if L==0: S=SQ[4*h:4*h+4]; Q=[r+1 for r in S]; xq=CQ[h]
        else:
            S=[CQ[1]+k for k in range(4)]; Q=[CQ[2]+k for k in range(4)]; xq=CQ[0]
            o+=[('vw',['cl']),f'C_chk{h}:',f'v_cmp_eq_u32 s[84:85], -1, v{xq}']
            for st in (4,2,1):
                for c in range(st):
                    for a in range(2): o+=addv(CQ[1+2*c+a],CQ[1+2*c+a],CQ[1+2*(c+st)+a],4,True)
        o+=[f'v_fma_f32 v{Q[k]}, -v{S[k]}, v{S[k]}, v{Q[k]}' for k in range(4)]
        if L:
            o+=[f'v_cmp_u_f32 s[74:75], v{Q[0]}, v{Q[1]}',f'v_cmp_u_f32 vcc, v{Q[2]}, v{Q[3]}','s_or_b64 s[84:85], s[84:85], s[74:75]','s_or_b64 vcc, vcc, s[84:85]','s_and_b64 vcc, vcc, s[56:57]',f's_cbranch_scc1 C_retry{h}']
            def r():
                A(f'C_retry{h}:'); tick(A); A.put(cloads(h)); A(f's_waitcnt vmcnt(0)\ns_branch C_chk{h}')
            tail.append(r)
        n0=len(o)
        o+=[f'v_cvt_pk_bf16_f32 v{q}, 0, |v{q}|' for q in Q]+[f'v_add_f32 v{q}, {F(1e-5)}, v{q}' for q in Q]+[f'v_cvt_pk_bf16_f32 v{q}, 0, v{q}' for q in Q]
        o+=[f'v_sqrt_f32 v{q}, v{q}' for q in Q]+[f'v_cvt_pk_bf16_f32 v{q}, 0, v{q}' for q in S+Q]+[f'v_rcp_f32 v{q}, v{q}' for q in Q]+unpack(xq,X,4)
        qp=lambda k: ('quad_perm:[0,0,2,2]' if k<4 else 'quad_perm:[1,1,3,3]')+' row_mask:0xf bank_mask:0xf'
        o+=[f'v_subrev_f32_dpp v{t+k}, v{S[k%4]}, v{X+k} {qp(k)}' for k in range(8)]+rnd(t,8)+[f'v_mul_f32_dpp v{t+k}, v{Q[k%4]}, v{t+k} {qp(k)}' for k in range(8)]
        o+=pack(t,UP,4)+[('ds',f'ds_write_b128 v{vUW}, {vr(UP,4)} offset:{2048*h}','uw')]
        return o,n0
    def frag(fr,reg):
        k,rr,i,h=fr
        if k=='A':
            o=64*(3-rr)+512*(7-i); return [f'ds_read_b64 {vr(reg,2)}, v{vKA} offset:{o}', f'ds_read_b64 {vr(reg+2,2)}, v{vKA} offset:{o+8}']
        return [f'ds_read_b128 {vr(reg,4)}, v{vUB} offset:{512*i+64*(3-rr)+2048*(h==1)}']
    def tri(h):
        mf=[]
        for rr in range(4):
            for j in range(4):
                for q in range(j+1):
                    y=vr(ACC+16*h+4*j,4); mf.append((('A',rr,q,h),('B',rr,j-q,h),f'v_mfma_f32_16x16x32_bf16 {y}, {{a}}, {{b}}, '+('0' if h==0 and rr==0 and q==0 else y)))
        return mf
    cross=[]
    for rr in range(4):
        for q in range(1,8):
            for j in range(4):
                m=4+j-q
                if 0<=m<4:
                    y=vr(ACC+16+4*j,4); cross.append((('A',rr,q,2),('B',rr,m,2),f'v_mfma_f32_16x16x32_bf16 {y}, {{a}}, {{b}}, '+('0' if rr==0 and m==3 else y)))
    ud=unpack(UP,UD,4)+[f'v_mul_f32 v{UD+k}, v{vD}, v{UD+k}' for k in range(8)]+rnd(UD,8)
    yw=lambda h:[('ds',f'ds_write_b128 v{vYW}, {vr(ACC+16*h+4*j,4)} offset:{1280*j}','yw') for j in range(4)]
    yr=[('ds',f'ds_read_b128 {vr(t+4*k,4)}, v{vYR} offset:{YW*(k//2)+16*(k%2)}','yr') for k in range(4)]
    def epi(h,pk): return [('lw',['yr'])]+addv(t,t,t+8,8,pk)+rnd(t,8)+addv(t,t,UD,8,pk)+rnd(t,8)+addv(t,t,X,8,pk)+pack(t,UP,4)+\
        [f's_add_u32 s98, s36, {hx(X1[L]+h*MB)}',vm(f'buffer_store_dwordx4 {vr(UP,4)}, v{vCX}, s[8:11], s98 offen sc1','xs')]
    W=w1loads() if L==0 else []
    FL=CQ[2]
    fl=[f's_mov_b32 s3, {hx(PF)}',vm(f'buffer_load_dwordx2 {vr(FL,2)}, v{vRA}, s[8:11], s3 offen sc1','fl')]
    p,_=prep(0)
    if L==0: A.put(fl)
    A.put(p); A.put(('bar',['uw'])); ts()
    G={}; spread(G,ud,0,40)
    if L==0:
        g=opt('fg',2)
        G[g]+=[('vw',['fl']),'F_chk:',f'v_cmp_ne_u64 vcc, s[72:73], {vr(FL,2)}','s_and_b64 vcc, vcc, s[56:57]','s_cbranch_scc1 F_retry']
        def r():
            A('F_retry:'); tick(A); A.put(fl); A('s_waitcnt vmcnt(0)\ns_branch F_chk')
        tail.append(r)
        nw=opt('nw',26); spread(G,W[:nw],g+1,104); W=W[nw:]
    else: spread(G,cloads(1),40+opt('cg',20),104)
    for j,x in enumerate(yw(0)): G.setdefault(42+j,[]).append(x)
    G.setdefault(47,[]).extend([('bar',['yw'])]+yr)
    spread(G,epi(0,False),51,51+opt('eg',22))
    pipe(A,tri(0)+cross,frag,SLOTS,2,G,pre=9); ts()
    p,n0=prep(1); D=W+dma(L,0)+dma(L,1); k=opt('np%d'%L,(7,2)[L])
    A.put(mix(p,D[:k],n0)); A.put(('bar',['uw'])); ts()
    k2=opt('nt%d'%L,(17,12)[L])
    G={}; spread(G,ud,0,40); spread(G,D[k:k2],0,40)
    pipe(A,tri(1),frag,SLOTS,2,G,pre=9)
    A('s_nop 4'); A.put(yw(1)); A.put(('bar',['yw'])); ts()
    own=[]
    for s in range(8): own+=trd(OWN+4*s,vQ,1024*s,'o')
    e=epi(1,True); A.put(yr); A(f'v_mov_b32 v{MF+2}, 0\nv_mov_b32 v{MF+3}, 0'); A.put(mix(e[:-2],D[k2:])+e[-2:]); A.put([('vw',[('d',0)])]+own+[('lw',['o'])])
    A.put(small(OWN,8,STA)+['s_nop 4']+statfin(STA)); g1chk(A,L,0,tail); ts()
def g1chk(A,L,n,tail):
    A(f'v_cmp_u_f32 vcc, v{STA+4}, v{STA+4}\ns_and_b64 vcc, vcc, s[56:57]\ns_cbranch_scc1 G_r{L}{n}\nG_b{L}{n}:')
    A.put(('ds',f'ds_write_b32 v{vSW}, v{STA+4} offset:{1024*(n&1)}','sw'))
    tail.append(lambda: A(f'G_r{L}{n}:\ns_add_u32 s89, s{40+n%3}, {hx(X1[L]+(n//3)*MB)}\ns_mov_b32 s94, {hx(32768*(n%3))}\ns_call_b64 s[48:49], G_retry\ns_branch G_b{L}{n}'))
def g1retry(A):
    A('G_retry:'); tick(A)
    A(f's_add_u32 m0, s94, s60\nv_add_u32 v{STA}, s94, v{vQ}\ns_add_u32 s3, s89, 4096')
    for k in range(4): A(f'buffer_load_dwordx4 v{vLN}, s[8:11], s89 offen offset:{1024*k} sc1 lds')
    A('s_add_u32 m0, m0, 4096\ns_nop 0')
    for k in range(4): A(f'buffer_load_dwordx4 v{vLN}, s[8:11], s3 offen offset:{1024*k} sc1 lds')
    A('s_waitcnt vmcnt(0)')
    for s in range(8): A.put(trd(OWN+4*s,STA,1024*s,0))
    A.lall(); A.put(small(OWN,8,STA)+['s_nop 4']+statfin(STA))
    A(f'v_cmp_u_f32 vcc, v{STA+4}, v{STA+4}\ns_and_b64 vcc, vcc, s[56:57]\ns_cbranch_scc1 G_retry\ns_setpc_b64 s[48:49]')
def g1epi(L,n):
    P=ACC+16*(n&1); C=T+4*(n&1); HP=T+16; o=[]
    for j in range(0,8,2):
        a,b=[[f'v_mul_f32 v{t}, v{g}, v{g}', f'v_fma_f32 v{t}, v{t}, v{C+1}, v{C}', f'v_mul_f32 v{t}, v{t}, v{g}', f'v_exp_f32 v{t}, v{t}',
              f'v_mul_f32 v{g+8}, v{g+8}, v{g}', f'v_fma_f32 v{t}, v{t}, v{C+2}, v{C+2}', f'v_rcp_f32 v{t}, v{t}', f'v_mul_f32 v{g+8}, v{g+8}, v{t}'] for g,t in ((P+j,T+8+j),(P+j+1,T+9+j))]
        o+=[a[0],b[0],a[1],b[1],a[2],b[2],a[3],a[4],b[3],b[4],a[5],b[5],a[6],b[6],a[7],b[7],f'v_cvt_pk_bf16_f32 v{HP+j//2}, v{P+8+j}, v{P+9+j}']
    d=24 if n%3==2 else 20
    return o+[[f's_add_u32 s98, s{43+n%3}, {hx(HB[L]+(n//3)*32*88*1024)}',vm(f'buffer_store_dwordx4 {vr(HP,4)}, v{vLN}, s[{d}:{d+3}], s98 offen sc1','hs')]]
def g1stats(C):
    R=SRD_; k1=-2*0.7978845608028654*LOG2E
    return [f'v_add_f32 v{R}, v{R}, v{R+1}', f'v_add_f32 v{R+2}, v{R+2}, v{R+3}', f'v_add_f32 v{R+4}, v{R+4}, v{R+5}', f'v_add_f32 v{R+6}, v{R+6}, v{R+7}',
      f'v_add_f32 v{R}, v{R}, v{R+2}', f'v_add_f32 v{R+4}, v{R+4}, v{R+6}', f'v_mul_f32 v{R}, {F(-1/512)}, v{R}', f'v_mul_f32 v{R+4}, {F(1/512)}, v{R+4}',
      f'v_cvt_pk_bf16_f32 v{MF}, v{R}, v{R}', f'v_fma_f32 v{R+4}, -v{R}, v{R}, v{R+4}', f'v_cvt_pk_bf16_f32 v{R+4}, 0, |v{R+4}|', f'v_add_f32 v{R+4}, {F(1e-5)}, v{R+4}',
      f'v_cvt_pk_bf16_f32 v{R+4}, 0, v{R+4}', f'v_sqrt_f32 v{R+4}, v{R+4}', f'v_mov_b32 v{MF+1}, v{MF}', f'v_cvt_pk_bf16_f32 v{R+4}, 0, v{R+4}', f'v_rcp_f32 v{R}, v{R+4}', f'v_mul_f32 v{C+2}, v{R+4}, v{R+4}',
      f'v_mul_f32 v{R+1}, v{R}, v{R}', f'v_mul_f32 v{C}, {F(k1)}, v{R}', f'v_mul_f32 v{R+1}, {F(0.044715)}, v{R+1}', f'v_mul_f32 v{C+1}, v{R+1}, v{C}']
def g1tile(A,L,n,extra,tail):
    par=n&1; P=ACC+16*par; b=n%3; last=n==5
    A.put(('bar',['sw']))
    G={s:[] for s in range(33)}
    ad=lambda i,bb:(vQ2+i,0) if bb==2 else (vQ+i,32768*bb)
    G[0]+=[('ds',f'ds_read_b128 {vr(SRD_+4*k,4)}, v{vSR} offset:{1024*par+16*k}','st') for k in range(2)]
    for s in range(8,32):
        a,o=ad(s//8,b); G[s-5]+=trd(RING+4*(s%6),a,o+1024*(s%8),s)
    V=(dma(L,n+2) if n<4 else [])
    og=opt('og',17)
    if not last:
        a,o=ad(0,(n+1)%3); own=[]
        for s in range(8): own+=trd(OWN+4*s,a,o+1024*s,'o')
        G[og].append(('vw',[('d',n+1)])); spread(G,own,og,28)
    spread(G,V,0,16); spread(G,extra,opt('xg',16) if V and len(extra)<10 else 0,32)
    val=(g1epi(L,n-1) if n else []); st=[('lw',['st'])]+g1stats(T+4*par)
    val=val[:34]+st+val[34:]
    cap={s:max(0.5,6-len(G[s])) for s in range(33)}
    e=32 if last else 29
    spread(G,val,1 if n else 3,e,cap)
    def big(s):
        if s>=8 and s%2==0: A.lw([s,s+1])
        if L==0 and n==0 and s%4==0: A.vw([('w',s+k) for k in range(4)])
        bb=vr(OWN+4*s,4) if s<8 else vr(RING+4*(s%6),4)
        A(f'v_mfma_f32_32x32x16_bf16 {vr(P,16)}, {w1(s)}, {bb}, '+('0' if s==0 else vr(P,16))); A.put(G[s])
    for s in range(29): big(s)
    if not last:
        A.lw(['o']); A.put(small(OWN,8,STA)); sf=statfin(STA)
        G[29]+=['s_nop 3']*(len(G[29])<4)+sf[:5]; G[30]+=sf[5:]
    for s in range(29,32): big(s)
    if not last: g1chk(A,L,n+1,tail)
    A.vw([('w',32)])
    A(f'v_mfma_f32_32x32x16_bf16 {vr(P,16)}, {vr(WX,4)}, {vr(MF,4)}, {vr(P,16)}')
GR=[(0,3),(3,6),(6,9),(9,12),(12,15),(15,18),(18,22)]
def g2chk(g):
    a,b=GR[g]; t=RING+20; r=HQ[a:b]
    return [f'v_max3_u32 v{t}, v{r[0]}, v{r[1]}, v{r[2]}']+([f'v_max_u32 v{t}, v{t}, v{r[3]}'] if b-a>3 else [])+[f'v_cmp_eq_u32 vcc, -1, v{t}','s_and_b64 vcc, vcc, s[56:57]']
def g2(A,L,H,ts,tail):
    Y=[ACC,RING]; XQ=RING+16; t=ACC
    G={i:[] for i in range(-1,44)}
    for g,(a,b) in enumerate(GR):
        nm=f'{L}{H}{g}'
        G[max(-1,2*a-2)]+=[('vw',[('h',k) for k in range(a,b)])]+g2chk(g)+[f's_cbranch_scc1 H_r{nm}',f'H_b{nm}:']
        tail.append(lambda nm=nm,g=g: A(f'H_r{nm}:\ns_add_u32 s54, s46, {hx(HB[L]+H*32*88*1024)}\ns_call_b64 s[48:49], H_retry{g}\ns_branch H_b{nm}'))
    G[0]+=[f's_add_u32 s98, s47, {hx(X1[L]+H*MB)}',vm(f'buffer_load_dwordx4 {vr(XQ,4)}, v{vXW}, s[8:11], s98 offen sc1','xq')]
    N=hloads(L,1) if H==0 else cloads(0) if L==0 else []
    if H==0:
        G[0].append('s_nop 3'); spread(G,g1epi(L,5),1,opt('fe',16),{s:max(0.5,6-len(G[s])) for s in range(44)})
        k=opt('hk',4); spread(G,N[:k],opt('hg',36),44)
    else: k=opt('ck',17); spread(G,N[:k],opt('kg',10),44)
    N=N[k:]
    A.put(G[-1])
    for i in range(44):
        y=vr(Y[i&1],16); A(f'v_mfma_f32_32x32x16_bf16 {y}, {vr(HQ[i//2],4)}, {ar(4*i,4)}, '+('0' if i<2 else y)); A.put(G[i])
    ts()
    e=[('vw',['xq'])]+unpack(XQ,T,4)+['s_nop 2']+[('ds',f'ds_write_b128 v{vRW}, {vr(Y[k//4]+4*(k%4),4)} offset:{1088*k}','rw') for k in range(8)]+[('bar',['rw'])]
    e+=[('ds',f'ds_read_b128 {vr(t+4*k,4)}, v{vRR} offset:{RW*(k//2)+512*(k%2)}',('rr',k//4)) for k in range(8)]
    e+=[('lw',[('rr',0)])]+addv(t,t,t+8,8,True)+[('lw',[('rr',1)])]+addv(t+16,t+16,t+24,8,True)+addv(t,t,t+16,8,True)+rnd(t,8)+addv(t,t,T,8,True)+pack(t,T+16,4)
    e+=[('ds',f'ds_write_b128 v{vXT}, {vr(T+16,4)}','xt')]
    if L==0:
        e+=[f's_add_u32 s98, s47, {hx(X2+H*MB)}',vm(f'buffer_store_dwordx4 {vr(T+16,4)}, v{vXW}, s[8:11], s98 offen sc1','x2'),('bar',['xt'])]
        for s in range(4): e+=trd(t+4*s,vXL,1024*s,'xr')
        e+=[f's_add_u32 s98, s50, {hx(ST1+H*8192)}',('lw',['xr'])]+small(t,4,t+16)+['s_nop 4']+statfin(t+16)+[f'v_mul_f32 v{t+20}, {F(1/512)}, v{t+20}']
        f=['s_mov_b64 exec, s[82:83]',vm(f'buffer_store_dword v{t+20}, v{vL4}, s[8:11], s98 offen sc1','ss'),'s_mov_b64 exec, -1']
    else:
        e+=['s_lshl_b32 s3, s6, 10',f'v_add_u32 v{T}, s3, v{vXL}',f's_add_u32 s98, s51, {hx(H*MB)}',('lw',['xt'])]+trd(t,T,0,'xr')+[('lw',['xr'])]
        f=[vm(f'buffer_store_dwordx4 {vr(t,4)}, v{vOUT}, s[16:19], s98 offen'+' sc1'*opt('osc',1),'out')]+['s_barrier']*(1-H)
    A.put(mix(e,N,1)+f); ts()
def g2retry(A):
    for g,(a,b) in enumerate(GR):
        A(f'H_retry{g}:'); tick(A)
        for k in range(a,22):
            if k==a or k%4==0: A(f's_add_u32 s3, s54, {1024*(k&~3)}')
            A(f'buffer_load_dwordx4 {vr(HQ[k],4)}, v{vLN}, s[8:11], s3 offen offset:{1024*(k%4)} sc1')
        A('s_waitcnt vmcnt(0)'); A.put(g2chk(g)); A(f's_cbranch_scc1 H_retry{g}\ns_setpc_b64 s[48:49]')
def kernel(TS=False):
    A=E(); tail=[]; nts=[0]
    def ts():
        if TS: A(('s_memtime' if 'cyc' in OPT else 's_memrealtime')+' s[86:87]'); A.lall(); A(f'v_writelane_b32 v21, s86, {nts[0]}'); nts[0]+=1
    ts()
    SQ=prologue(A,ts,tail); ts()
    for L in range(2):
        conv(A,L,SQ,ts,tail)
        X=[[] for _ in range(6)]; X[5]=hloads(L,0)
        if L==0:
            w=w2loads(); f=fills(F2,8,200,'f2')
            for n in range(4): X[n]=w[7*n:7*n+7]+f[2*n:2*n+2]
            X[4]=w[28:]
        for n in range(6): g1tile(A,L,n,X[n],tail); ts()
        g2(A,L,0,ts,tail); g2(A,L,1,ts,tail)
    A(f'''s_or_b32 s3, s2, s6
s_cbranch_scc1 B_fin
v_mov_b32 v32, s72
v_mov_b32 v33, 0
s_mov_b32 s3, {hx(NONCE)}
s_mov_b64 exec, 1
buffer_store_dword v32, v33, s[8:11], s3 offen
s_mov_b64 exec, -1
B_fin:''')
    if TS:
        A('s_waitcnt vmcnt(0)'); ts()
        A(f's_sub_u32 s86, 0x8000, s39\nv_writelane_b32 v21, s86, 63\ns_lshl_b32 s3, s2, 2\ns_add_u32 s3, s3, s6\ns_lshl_b32 s3, s3, 8\ns_add_u32 s3, s3, {hx(WS_DBG)}\ns_movk_i32 s86, {nts[0]}\nv_writelane_b32 v21, s86, 62\nbuffer_store_dword v21, v{vL4}, s[8:11], s3 offen')
    A('s_endpgm')
    for r in tail: r()
    g1retry(A); g2retry(A)
    A('B_end:\ns_endpgm')
    return A
```

```python
from common import *
import math
LOG2E=math.log2(math.e)
L1=[0,1,2,3,4,5,6,7,256,258,512,768,260,262,516,772,1024,1280,1536,1792,None,None,None,None,2048]
RS=272
WREG=57*RS
LDS_A=4*WREG
def cmul(A,dr,di,xr,xi,yr,yi,t):
    A(f'''v_mul_f32 v{t}, v{xi}, v{yi}
v_mul_f32 v{t+1}, v{xi}, v{yr}
v_fma_f32 v{di}, v{xr}, v{yi}, v{t+1}
v_fma_f32 v{dr}, v{xr}, v{yr}, -v{t}''')
def fill(A,first,nwg,vt,wgreg):
    tot=FILL_HI-FILL_LO; n=-(-tot//(nwg*4096))
    A(f'''v_mov_b32 v{vt}, -1
v_mov_b32 v{vt+1}, -1
v_mov_b32 v{vt+2}, -1
v_mov_b32 v{vt+3}, -1
s_lshl_b32 s44, s{wgreg}, 12
v_lshlrev_b32 v{vt+4}, 4, v0''')
    for i in range(n):
        A(f'buffer_store_dwordx4 v[{vt}:{vt+3}], v{vt+4}, s[40:43], s44 offen')
        if i<n-1: A(f's_add_u32 s44, s44, {hx(nwg*4096)}')
def kgen(A):
    A('''s_load_dwordx4 s[4:7], s[0:1], 8
s_load_dwordx4 s[8:11], s[0:1], 24
s_load_dwordx4 s[12:15], s[0:1], 40
s_load_dwordx2 s[16:17], s[0:1], 56
s_lshl_b32 s3, s2, 9
v_lshl_add_u32 v1, v0, 1, s3
v_lshrrev_b32 v2, 8, v1
v_lshlrev_b32 v2, 1, v2
s_waitcnt lgkmcnt(0)''')
    A('s_mov_b32 s22, 131072\ns_mov_b32 s23, 0x00020000')
    for i in range(6):
        A(f's_mov_b32 s20, s{4+2*i}\ns_mov_b32 s21, s{5+2*i}\nbuffer_load_ushort v{4+i}, v1, s[20:23], 0 offen')
    A('s_mov_b32 s20, s16\ns_mov_b32 s21, s17\ns_mov_b32 s22, 1024\nbuffer_load_ushort v10, v2, s[20:23], 0 offen')
    fill(A,0,512,56,2)
    nf=-(-(FILL_HI-FILL_LO)//(512*4096))
    A(f'''v_lshrrev_b32 v3, 6, v0
v_and_b32 v11, 63, v0
s_movk_i32 s3, {WREG}
v_mul_lo_u32 v3, v3, s3
v_lshl_add_u32 v12, v11, 2, v3
s_waitcnt vmcnt({nf})''')
    for i in range(7): A(f'v_lshlrev_b32 v{4+i}, 16, v{4+i}')
    A(f'''v_mul_f32 v10, {F(LOG2E)}, v10
v_exp_f32 v10, v10
s_nop 0
v_cvt_pk_bf16_f32 v10, v10, v10
v_lshlrev_b32 v10, 16, v10
v_mul_f32 v4, v10, v4
v_mul_f32 v5, v10, v5
v_mul_f32 v6, v10, v6
v_mul_f32 v7, v10, v7''')
    cmul(A,14,15,8,9,6,7,16)
    A(f'v_mul_f32 v4, {F(LOG2E)}, v4\nv_mul_f32 v5, {F(1/(2*math.pi))}, v5')
    for r,l in ((20,1),(22,8),(24,256)):
        A(f'''v_mul_f32 v16, {F(l)}, v4
v_mul_f32 v17, {F(l)}, v5
v_exp_f32 v16, v16
v_fract_f32 v17, v17
v_cos_f32 v{r}, v17
v_sin_f32 v{r+1}, v17
s_nop 0
v_mul_f32 v{r}, v16, v{r}
v_mul_f32 v{r+1}, v16, v{r+1}''')
    aops=[]; reg={0:14}; nxt=[26]
    def wr_a(l):
        r=reg[l]; row=L1.index(l)
        return f'v_cvt_pk_bf16_f32 v18, v{r}, -v{r+1}\nds_write_b32 v12, v18 offset:{row*RS}'
    A(wr_a(0))
    seq=[(l,l-1,20) for l in range(1,8)]+[(256,0,24),(258,2,24),(260,4,24),(262,6,24),(512,256,24),(516,260,24),(768,512,24),(772,516,24)]+[(l,l-256,24) for l in (1024,1280,1536,1792,2048)]
    slot={1:26,2:28,3:26,4:30,5:26,6:32,7:26,256:14,258:28,260:30,262:32,512:14,516:30,768:14,772:30,1024:14,1280:14,1536:14,1792:14,2048:14}
    A(f'v_mov_b32 v19, 0x3f80\nds_write_b32 v12, v19 offset:{25*RS}\nv_mov_b32 v34, v22\nv_mov_b32 v35, v23')
    for j in range(1,32):
        if j>1: cmul(A,34,35,34,35,22,23,36)
        A(f'v_cvt_pk_bf16_f32 v19, v34, v35\nds_write_b32 v12, v19 offset:{(25+j)*RS}')
        if j-1<len(seq):
            l,src,e=seq[j-1]; d=slot[l]; s_=reg[src]
            cmul(A,d,d+1,s_,s_+1,e,e+1,16); reg[l]=d
            A(wr_a(l))
    A(f'''v_and_b32 v13, 31, v0
v_bfe_u32 v16, v0, 5, 1
s_movk_i32 s3, {RS}
v_mad_u32_u24 v17, v13, s3, v3
v_lshl_add_u32 v17, v16, 4, v17
s_waitcnt lgkmcnt(0)''')
    for h in range(2):
        for k in range(4):
            A(f'ds_read_b128 v[{20+8*k}:{23+8*k}], v17 offset:{(4*h+k)*32}\nds_read_b128 v[{24+8*k}:{27+8*k}], v17 offset:{25*RS+(4*h+k)*32}')
        for k in range(4):
            c='0' if h==0 and k==0 else 'v[64:79]'
            A(f's_waitcnt lgkmcnt({6-2*k})\nv_mfma_f32_32x32x16_bf16 v[64:79], v[{20+8*k}:{23+8*k}], v[{24+8*k}:{27+8*k}], {c}')
    A(f'''v_lshrrev_b32 v18, 1, v13
v_lshl_add_u32 v18, v13, 3, v18
v_lshl_add_u32 v18, v16, 2, v18
v_lshl_add_u32 v18, v18, 2, v3
v_mov_b32 v20, 0
v_mov_b32 v21, 0
v_mov_b32 v22, 0
v_mov_b32 v23, 0
s_nop 4
ds_write_b128 v3, v[20:23]''')
    for r in range(13):
        l=L1[8*(r//4)+r%4]
        A(f'ds_write_b32 v18, v{64+r} offset:{16+4*(l+(l>>4))}')
    A(f'''v_and_b32 v4, 127, v0
v_lshlrev_b32 v5, 4, v4
v_sub_u32 v5, 2047, v5
v_lshrrev_b32 v6, 7, v0
s_movk_i32 s3, {2*WREG}
v_mul_lo_u32 v7, v6, s3
v_add_u32 v7, 16, v7''')
    for k in range(19):
        A(f'v_subrev_u32 v{20+k}, {k}, v5\nv_cvt_f32_i32 v{20+k}, v{20+k}')
    for k in range(0,19,2):
        A(f'v_cvt_pk_bf16_f32 v{20+k}, v{20+k}, v{21+k}')
        if k<18: A(f'v_and_b32 v{21+k}, 0xffff0000, v{20+k}')
        A(f'v_lshlrev_b32 v{20+k}, 16, v{20+k}')
    for k in range(19):
        A(f'''v_cvt_i32_f32 v{20+k}, v{20+k}
v_ashrrev_i32 v8, 4, v{20+k}
v_add_u32 v{20+k}, v{20+k}, v8
v_lshl_add_u32 v{20+k}, v{20+k}, 2, v7''')
    A('s_waitcnt lgkmcnt(0)\ns_barrier')
    for k in range(19):
        A(f'ds_read_b32 v{40+k}, v{20+k} offset:{WREG}\nds_read_b32 v{20+k}, v{20+k}')
    A(f'''s_mul_i32 s3, s2, {KTS}
s_add_u32 s3, s3, {hx(WS_KT)}
s_movk_i32 s4, {4*KC}
v_lshlrev_b32 v9, 5, v4
v_mad_u32_u24 v9, v6, s4, v9
s_waitcnt lgkmcnt(0)''')
    for k in range(19): A(f'v_add_f32 v{20+k}, v{20+k}, v{40+k}')
    for c in range(4):
        b=64+8*c
        for k in range(8): A(f'v_cvt_pk_bf16_f32 v{b+k}, v{20+2*k+c}, v{21+2*k+c}')
        A(f'buffer_store_dwordx4 v[{b}:{b+3}], v9, s[36:39], s3 offen\nbuffer_store_dwordx4 v[{b+4}:{b+7}], v9, s[36:39], s3 offen offset:16')
        if c<3: A(f's_add_u32 s3, s3, {KC}')
    A(f'''s_sub_u32 s3, s3, {3*KC-4096}
v_lshrrev_b32 v9, 2, v0
s_movk_i32 s4, {KC}
v_and_b32 v10, 3, v0
v_lshlrev_b32 v10, 4, v10
v_mad_u32_u24 v9, v9, s4, v10
v_mov_b32 v4, 0
v_mov_b32 v5, 0
v_mov_b32 v6, 0
v_mov_b32 v7, 0
v_cmp_gt_u32 vcc, 32, v0
s_and_saveexec_b64 s[6:7], vcc
buffer_store_dwordx4 v[4:7], v9, s[36:39], s3 offen
s_endpgm''')
def wavesum(A,regs):
    for dpp in ('row_shr:1','row_shr:2','row_shr:4','row_shr:8','row_bcast:15 row_mask:0xa','row_bcast:31 row_mask:0xc'):
        for r in regs:
            m='' if 'mask' in dpp else ' row_mask:0xf'
            A(f'v_add_f32_dpp v{r}, v{r}, v{r} {dpp}{m} bank_mask:0xf')
        if len(regs)<3: A('s_nop 1')
def data(A):
    A('''s_load_dwordx2 s[6:7], s[0:1], 0
s_load_dwordx4 s[8:11], s[0:1], 80
s_load_dwordx2 s[12:13], s[0:1], 96
s_sub_u32 s5, s2, 256
v_lshrrev_b32 v1, 6, v0
v_and_b32 v2, 63, v0
s_waitcnt lgkmcnt(0)''')
    srd(A,16,6,2*MB); srd(A,20,8,512*2752); srd(A,24,10,512*2752); srd(A,28,12,1376*1024)
    A('''s_lshl_b32 s3, s5, 13
v_lshlrev_b32 v3, 11, v1
v_lshl_add_u32 v3, v2, 4, v3
buffer_load_dwordx4 v[8:11], v3, s[16:19], s3 offen
buffer_load_dwordx4 v[12:15], v3, s[16:19], s3 offen offset:1024
s_lshr_b32 s14, s5, 3
s_and_b32 s15, s5, 7
s_lshl_b32 s3, s14, 15
s_lshl_b32 s4, s15, 7
s_add_u32 s3, s3, s4
v_lshrrev_b32 v4, 3, v0
v_and_b32 v5, 7, v0
v_lshlrev_b32 v5, 4, v5
v_lshl_add_u32 v6, v4, 10, v5
buffer_load_dwordx4 v[16:19], v6, s[16:19], s3 offen
s_add_u32 s3, s3, 0x100000
buffer_load_dwordx4 v[20:23], v6, s[16:19], s3 offen''')
    A('''s_cmp_ge_u32 s5, 176
s_cbranch_scc1 A_w2ld
s_lshr_b32 s33, s5, 1
s_and_b32 s34, s5, 1
s_mul_i32 s3, s34, 704512
s_lshl_b32 s4, s33, 5
s_add_u32 s3, s3, s4
v_lshrrev_b32 v7, 1, v0
s_movk_i32 s4, 2752
v_and_b32 v61, 1, v0
v_lshlrev_b32 v61, 4, v61
v_mad_u32_u24 v62, v7, s4, v61
buffer_load_dwordx4 v[24:27], v62, s[20:23], s3 offen
buffer_load_dwordx4 v[28:31], v62, s[24:27], s3 offen
s_add_u32 s3, s3, 352256
buffer_load_dwordx4 v[32:35], v62, s[20:23], s3 offen
buffer_load_dwordx4 v[36:39], v62, s[24:27], s3 offen
s_branch A_ldd
A_w2ld:
s_sub_u32 s33, s5, 176
s_lshl_b32 s3, s33, 15
v_lshlrev_b32 v62, 4, v0''')
    for i in range(8):
        A(f'buffer_load_dwordx4 v[{24+4*i}:{27+4*i}], v62, s[28:31], s3 offen\ns_add_u32 s3, s3, 4096')
    A('A_ldd:')
    fill(A,0,512,56,2)
    nf=-(-(FILL_HI-FILL_LO)//(512*4096))
    A(f's_waitcnt vmcnt({nf})')
    A('''s_movk_i32 s4, 144
v_mad_u32_u24 v6, v4, s4, v5
ds_write_b128 v6, v[16:19]
ds_write_b128 v6, v[20:23] offset:4608
s_mov_b32 s4, 0x3f803f80
v_mov_b32 v16, 0
v_mov_b32 v17, 0
v_mov_b32 v18, 0
v_mov_b32 v19, 0''')
    for k in range(4):
        A(f'''v_dot2_f32_bf16 v16, v{8+k}, s4, v16
v_dot2_f32_bf16 v17, v{12+k}, s4, v17
v_dot2_f32_bf16 v18, v{8+k}, v{8+k}, v18
v_dot2_f32_bf16 v19, v{12+k}, v{12+k}, v19''')
    A('s_nop 3')
    wavesum(A,[16,17,18,19])
    A(f'''s_lshr_b32 s3, s5, 2
s_lshl_b32 s3, s3, 8
s_and_b32 s4, s5, 3
s_lshl_b32 s4, s4, 5
s_add_u32 s3, s3, s4
s_add_u32 s3, s3, {hx(WS_ST0)}
v_lshlrev_b32 v3, 3, v1
v_cmp_eq_u32 vcc, 63, v2
s_and_saveexec_b64 s[46:47], vcc
buffer_store_dwordx2 v[16:17], v3, s[36:39], s3 offen
buffer_store_dwordx2 v[18:19], v3, s[36:39], s3 offen offset:128
s_mov_b64 exec, s[46:47]''')
    A('''s_cmp_ge_u32 s5, 176
s_cbranch_scc1 A_w2st
v_lshl_add_u32 v62, v7, 6, v61
ds_write_b128 v62, v[24:27] offset:9216
ds_write_b128 v62, v[28:31] offset:9248
ds_write_b128 v62, v[32:35] offset:17408
ds_write_b128 v62, v[36:39] offset:17440
s_branch A_std
A_w2st:
s_movk_i32 s4, 1088
v_lshlrev_b32 v61, 4, v2
v_mad_u32_u24 v62, v1, s4, v61''')
    for i in range(8): A(f'ds_write_b128 v62, v[{24+4*i}:{27+4*i}] offset:{9216+i*4*1088}')
    A('A_std:')
    A(f'''v_bfe_u32 v8, v0, 2, 2
v_and_b32 v9, 3, v0
v_bfe_u32 v10, v0, 4, 2
v_lshl_add_u32 v11, v10, 3, v8
s_movk_i32 s4, 144
v_lshlrev_b32 v12, 3, v9
v_lshl_add_u32 v12, v1, 5, v12
v_mad_u32_u24 v11, v11, s4, v12
v_and_b32 v12, 15, v0
v_lshlrev_b32 v12, 6, v12
v_lshl_add_u32 v12, v10, 4, v12
v_lshl_add_u32 v12, v1, 10, v12
s_lshl_b32 s3, s14, 15
s_lshl_b32 s4, s15, 12
s_add_u32 s3, s3, s4
s_waitcnt lgkmcnt(0)
s_barrier
ds_read_b64_tr_b16 v[16:17], v11
ds_read_b64_tr_b16 v[18:19], v11 offset:576
ds_read_b64_tr_b16 v[20:21], v11 offset:4608
ds_read_b64_tr_b16 v[22:23], v11 offset:5184
s_waitcnt lgkmcnt(0)
buffer_store_dwordx4 v[16:19], v12, s[36:39], s3 offen
s_add_u32 s3, s3, 0x100000
buffer_store_dwordx4 v[20:23], v12, s[36:39], s3 offen
v_lshrrev_b32 v13, 1, v10
v_and_b32 v14, 1, v10
v_lshlrev_b32 v15, 4, v2
s_cmp_ge_u32 s5, 176
s_cbranch_scc1 A_w2p''')
    A(f'''v_lshl_add_u32 v11, v13, 3, v8
v_lshl_add_u32 v11, v1, 6, v11
v_lshlrev_b32 v11, 6, v11
v_lshl_add_u32 v11, v14, 5, v11
v_lshl_add_u32 v11, v9, 3, v11''')
    for k in range(4):
        A(f'ds_read_b64_tr_b16 v[{24+4*k}:{25+4*k}], v11 offset:{9216+k*1024}\nds_read_b64_tr_b16 v[{26+4*k}:{27+4*k}], v11 offset:{9216+k*1024+256}')
    A(f'''s_mul_i32 s3, s33, {33*1024}
s_add_u32 s3, s3, {hx(WS_W1)}
s_lshl_b32 s4, s34, 14
s_add_u32 s4, s4, s3
v_lshl_add_u32 v12, v1, 12, v15
s_mov_b32 s6, 0x3f803f80
v_mov_b32 v40, 0
s_waitcnt lgkmcnt(0)''')
    for k in range(4): A(f'buffer_store_dwordx4 v[{24+4*k}:{27+4*k}], v12, s[36:39], s4 offen offset:{k*1024}')
    for k in range(16): A(f'v_dot2_f32_bf16 v40, v{24+k}, s6, v40')
    A('''v_lshlrev_b32 v11, 2, v0
v_and_b32 v12, 31, v0
v_lshlrev_b32 v12, 2, v12
s_nop 1
ds_write_b32 v11, v40 offset:49152
s_waitcnt lgkmcnt(0)
s_barrier''')
    for k in range(8): A(f'ds_read_b32 v{44+k}, v12 offset:{49152+128*k}')
    A('s_waitcnt lgkmcnt(0)')
    for k in range(1,8): A(f'v_add_f32 v44, v44, v{44+k}')
    A(f'''v_cvt_pk_bf16_f32 v45, v44, v44
v_and_b32 v46, 0xffff0000, v45
v_sub_f32 v44, v44, v46
v_cvt_pk_bf16_f32 v48, v46, v44
v_and_b32 v46, 0xffff0000, v48
v_sub_f32 v44, v44, v46
v_mov_b32 v50, 0
v_mov_b32 v51, 0
v_cvt_pk_bf16_f32 v49, v44, v50
s_lshl_b32 s4, s34, 9
s_add_u32 s3, s3, s4
s_add_u32 s3, s3, 32768
v_cmp_gt_u32 vcc, 32, v0
s_and_saveexec_b64 s[46:47], vcc
buffer_store_dwordx4 v[48:51], v15, s[36:39], s3 offen
s_endpgm
A_w2p:
s_cmp_ge_u32 s5, 220
s_cbranch_scc1 A_end''')
    A(f'''v_lshl_add_u32 v11, v13, 2, v8
s_movk_i32 s4, 1088
v_lshlrev_b32 v12, 8, v1
v_lshl_add_u32 v12, v14, 5, v12
v_lshl_add_u32 v12, v9, 3, v12
v_mad_u32_u24 v11, v11, s4, v12''')
    for u in range(2):
        for k in range(4):
            b=24+16*u+4*k; o=9216+u*16*1088+64*k
            A(f'ds_read_b64_tr_b16 v[{b}:{b+1}], v11 offset:{o}\nds_read_b64_tr_b16 v[{b+2}:{b+3}], v11 offset:{o+8*1088}')
        A('s_waitcnt lgkmcnt(0)')
    A(f'''s_mov_b32 s4, {2*88*2048}
v_mul_lo_u32 v12, v1, s4
v_add_u32 v12, v12, v15
s_lshl_b32 s3, s33, 12
s_add_u32 s3, s3, {hx(WS_W2)}
s_add_u32 s4, s3, {88*2048}''')
    for u in range(2):
        for k in range(4):
            b=24+16*u+4*k
            A(f'buffer_store_dwordx4 v[{b}:{b+3}], v12, s[36:39], s{3+(k>>1)} offen offset:{u*2048+(k&1)*1024}')
    A('A_end:\ns_endpgm')
def kernelA(TS=False):
    A=Asm()
    if TS: A('s_memrealtime s[86:87]')
    A('''s_cmp_ge_u32 s2, 512
s_cbranch_scc1 A_end
s_load_dwordx2 s[34:35], s[0:1], 120
s_waitcnt lgkmcnt(0)''')
    srd(A,36,34,WS_SIZE); srd(A,40,34,FILL_HI-FILL_LO,FILL_LO)
    A('s_cmp_ge_u32 s2, 256\ns_cbranch_scc1 A_data')
    kgen(A)
    A('A_data:')
    data(A)
    if TS:
        A.l=[('s_branch A_fin' if x=='s_endpgm' else x) for x in A.l]
        A(f'''A_fin:
s_cmp_ge_u32 s2, 512
s_cbranch_scc1 A_fin2
s_mov_b64 exec, 1
s_memrealtime s[88:89]
s_waitcnt vmcnt(0)
s_memrealtime s[90:91]
s_waitcnt lgkmcnt(0)
v_mov_b32 v4, s86
v_mov_b32 v5, s88
v_mov_b32 v6, s90
v_mov_b32 v7, s90
s_lshl_b32 s3, s2, 6
s_add_u32 s3, s3, {hx(WS_DBG+MB)}
v_lshrrev_b32 v0, 2, v0
buffer_store_dwordx4 v[4:7], v0, s[36:39], s3 offen
A_fin2:
s_endpgm''')
    return A.text()
```

```python
from common import *
import math
LOG2E=math.log2(math.e)
XB=0; L_KT=98304; L_U=L_KT+KTS; UCH=4608; L_SX=L_U+2*UCH; L_XT=L_SX+2048; LDS_B=L_XT+4096
L_Y=65536; YW=5120; RW=8704
vKA,vUB,vUT,vCX,vCS,vUW,vYW,vYR,vL,vLN,vSW,vSR,vD,vRW,vRR,vQ,vON=1,2,3,4,5,6,7,8,9,10,11,12,13,14,15,16,22
vOUT,vXW=20,21
ACC=24; TMP=56; OWN=80; RING=112; STA=128; MF=144; HP=148; SRD_=152
WX=204; W1V=208
import os
OPT=set(os.environ.get('OPT','').split(','))
class LG:
    def __init__(s,A): s.A=A; s.q=[]
    def op(s,txt,tag=None): s.A(txt); s.q.append(tag); assert len(s.q)<=40
    def wait(s,tags):
        idx=[i for i,t in enumerate(s.q) if t in tags]
        if not idx: return
        n=len(s.q)-1-max(idx)
        n=min(n,15)
        s.A(f's_waitcnt lgkmcnt({n})'); s.q=s.q[len(s.q)-n:] if n else []
    def all(s): s.A('s_waitcnt lgkmcnt(0)'); s.q=[]
def w1(s):
    return ar(176+4*s,4) if s<20 else vr(W1V+4*(s-20),4)
def pipe(A,mf,frag,slots,per,fill=(),pre=0):
    lg=LG(A); order=[]; last={}
    for i,(a,b,_) in enumerate(mf):
        for f in (a,b):
            if f not in last: order.append(f)
            last[f]=i
    free=list(slots); where={}; pend=[]; fill=list(fill)
    def issue(k):
        n=0
        while n<k:
            if not pend:
                if not order or not free: return
                f=order.pop(0); where[f]=free.pop(0); pend.extend((t,f) for t in frag(f,where[f]))
            if len(lg.q)>=15: return
            t,f=pend.pop(0); lg.op(t,f); n+=1
    issue(pre)
    for i,(a,b,fmt) in enumerate(mf):
        while a not in where or b not in where or any(f in (a,b) for _,f in pend):
            if len(lg.q)>=15: lg.wait([lg.q[0]])
            issue(1)
        lg.wait([a,b])
        A(fmt.format(a=vr(where[a],4),b=vr(where[b],4)))
        for f in (a,b):
            if last[f]==i: free.append(where[f])
        q0=len(A.l); issue(per); used=len(A.l)-q0
        for _ in range(max(0,3-used)):
            if fill: A(fill.pop(0))
    for x in fill: A(x)
def unpack(src,dst,n):
    o=[]
    for k in range(n): o+= [f'v_and_b32 v{dst+2*k+1}, 0xffff0000, v{src+k}', f'v_lshlrev_b32 v{dst+2*k}, 16, v{src+k}']
    return o
def pack(src,dst,n): return [f'v_cvt_pk_bf16_f32 v{dst+k}, v{src+2*k}, v{src+2*k+1}' for k in range(n)]
def rnd(r,n,t):
    return pack(r,t,n)+unpack(t,r,n)
def retry_tick(A):
    A('s_sub_u32 s39, s39, 1\ns_cselect_b32 s56, 0, s56\ns_cselect_b32 s57, 0, s57')
def conv_loads(A):
    A(f'buffer_load_dwordx4 v[144:147], v{vCX}, s[8:11], s36 offen sc1')
    for ct in range(8):
        for h in range(2):
            r=80+32*h+4*ct
            A(f'buffer_load_dwordx4 v[{r}:{r+3}], v{vCS}, s[12:15], s{28+ct} offen offset:{128*h} sc1')
def x_dma(A,byte,bufreg):
    return [f's_bfe_u32 s3, s58, {hx((6<<16)|(8*byte))}', 's_lshl_b32 s3, s3, 15', 's_add_u32 s3, s3, s44', f's_add_u32 s4, s{bufreg}, s60',
      f's_bitcmp1_b32 s58, {8*byte+7}', f's_cselect_b32 s26, {hx(WS_SIZE)}, 0', 's_cselect_b32 m0, s4, 0x30000', 's_add_u32 s4, s3, 4096']+\
      [f'buffer_load_dwordx4 v{vLN}, s[24:27], s3 offen offset:{1024*k} sc1 lds' for k in range(4)]+\
      ['s_add_u32 m0, m0, 4096','s_nop 0']+\
      [f'buffer_load_dwordx4 v{vLN}, s[24:27], s4 offen offset:{1024*k} sc1 lds' for k in range(4)]
def small(base,nfr,STA=STA):
    o=[]
    for k in range(2*nfr):
        r=vr(base+2*k,2); p=k&1
        o.append(f'v_mfma_f32_4x4x4_16b_bf16 {vr(STA+8*p,4)}, {r}, {r}, '+('0' if k<2 else vr(STA+8*p,4)))
        o.append(f'v_mfma_f32_4x4x4_16b_bf16 {vr(STA+4+8*p,4)}, {vr(vON,2)}, {r}, '+('0' if k<2 else vr(STA+4+8*p,4)))
    return o
def statfin(STA=STA):
    S=STA
    return [f'v_add_f32 v{S+k}, v{S+k}, v{S+8+k}' for k in range(5)]+\
      [f'v_cndmask_b32 v{S}, v{S}, v{S+1}, s[62:63]', f'v_cndmask_b32 v{S+2}, v{S+2}, v{S+3}, s[62:63]', f'v_cndmask_b32 v{S}, v{S}, v{S+2}, s[64:65]',
       's_nop 1', f'v_permlane32_swap_b32 v{S+4}, v{S}', 's_nop 0', f'v_add_f32 v{S+4}, v{S+4}, v{S}']
def g1_epi(P,C,HP=HP):
    st=[]
    for j in range(8):
        g=P+j;u=P+8+j;t=TMP+8+j
        st.append([f'v_mul_f32 v{t}, v{g}, v{g}', f'v_fma_f32 v{t}, v{t}, v{C+1}, v{C}', f'v_mul_f32 v{t}, v{t}, v{g}', f'v_exp_f32 v{t}, v{t}',
                   f'v_mul_f32 v{u}, v{u}, v{g}', f'v_fma_f32 v{t}, v{t}, v{C+2}, v{C+2}', f'v_rcp_f32 v{t}, v{t}', None, f'v_mul_f32 v{u}, v{u}, v{t}'])
    o=[]
    for j in range(0,8,2):
        a,b=st[j],st[j+1]
        o+=[a[0],b[0],a[1],b[1],a[2],b[2],a[3],a[4],b[3],b[4],a[5],b[5],a[6],b[6],a[8]]
        o+=[('POST',b[8],f'v_cvt_pk_bf16_f32 v{HP+j//2}, v{P+8+j}, v{P+9+j}')]
    r=[]
    for x in o:
        if isinstance(x,tuple): r+=[x[1],x[2]]
        else: r.append(x)
    pre=['s_and_b32 s3, s58, 63', f's_mul_i32 s3, s3, {88*1024}', 's_add_u32 s45, s3, s47', 's_bitcmp1_b32 s58, 6', f's_cselect_b32 s22, {hx(WS_SIZE)}, 0']
    return pre,r,[f'buffer_store_dwordx4 v[{HP}:{HP+3}], v{vLN}, s[20:23], s45 offen sc1']
def g1_stats(C):
    R=SRD_; k1=-2*0.7978845608028654*LOG2E; k2=k1*0.044715
    return [f'v_add_f32 v{R}, v{R}, v{R+1}', f'v_add_f32 v{R+2}, v{R+2}, v{R+3}', f'v_add_f32 v{R+4}, v{R+4}, v{R+5}', f'v_add_f32 v{R+6}, v{R+6}, v{R+7}',
      f'v_add_f32 v{R}, v{R}, v{R+2}', f'v_add_f32 v{R+4}, v{R+4}, v{R+6}', f'v_mul_f32 v{R}, {F(-1/512)}, v{R}', f'v_mul_f32 v{R+4}, {F(1/512)}, v{R+4}',
      f'v_cvt_pk_bf16_f32 v{MF}, v{R}, v{R}', f'v_fma_f32 v{R+4}, -v{R}, v{R}, v{R+4}', f'v_mov_b32 v{MF+1}, v{MF}', f'v_max_f32 v{R+4}, 0, v{R+4}',
      f'v_cvt_pk_bf16_f32 v{R+4}, v{R+4}, v{R+4}', f'v_and_b32 v{R+4}, 0xffff0000, v{R+4}', f'v_add_f32 v{R+4}, {F(1e-5)}, v{R+4}',
      f'v_cvt_pk_bf16_f32 v{R+4}, v{R+4}, v{R+4}', f'v_and_b32 v{R+4}, 0xffff0000, v{R+4}', f'v_sqrt_f32 v{R+4}, v{R+4}', 's_nop 0',
      f'v_cvt_pk_bf16_f32 v{R+4}, v{R+4}, v{R+4}', f'v_and_b32 v{R+4}, 0xffff0000, v{R+4}', f'v_rcp_f32 v{R}, v{R+4}', f'v_mul_f32 v{C+2}, v{R+4}, v{R+4}',
      f'v_mul_f32 v{R+1}, v{R}, v{R}', f'v_mul_f32 v{C}, {F(k1)}, v{R}', f'v_mul_f32 v{R+1}, {F(0.044715)}, v{R+1}', f'v_mul_f32 v{C+1}, v{R+1}, v{C}']
def trd(reg,addr,off): return [f'ds_read_b64_tr_b16 {vr(reg,2)}, v{addr} offset:{off}', f'ds_read_b64_tr_b16 {vr(reg+2,2)}, v{addr} offset:{off+256}']
def g1_tile(A,par):
    P=ACC+16*par; Pp=ACC+16*(1-par); C=TMP+4*par; Cp=TMP+4*(1-par)
    lg=LG(A)
    A('s_waitcnt lgkmcnt(0)\ns_barrier')
    pre,epi,store=g1_epi(Pp,Cp)
    addr=[]
    for i in range(1,4): addr+=[f's_add_u32 s3, s50, s{66+i}', f'v_add_u32 v{vQ+i}, s3, v{vL}']
    addr0=['s_add_u32 s3, s51, s60', f'v_add_u32 v{vQ}, s3, v{vL}']
    dma=x_dma(A,3,46)
    stats=g1_stats(C)
    G={s:[] for s in range(33)}
    G[0]=addr[:2]+[('ds',f'ds_read_b128 {vr(SRD_,4)}, v{vSR} offset:{1024*par}','st'),('ds',f'ds_read_b128 {vr(SRD_+4,4)}, v{vSR} offset:{1024*par+16}','st')]+addr[2:]
    if par==0: G[0].append(('w2',))
    if 'burst' in OPT:
        G[1]=dma[:10]; G[2]=dma[10:15]; G[3]=dma[15:]+addr0+pre
    else:
        G[1]=addr0+pre; dma=[x.replace('s3,','s89,').replace('s3 ','s89 ') for x in dma]
        G[2]=dma[:9]
        for k,s_ in enumerate((4,6,8)): G[s_]=[dma[9+k]]
        G[9]=[dma[12]]
        for k,s_ in enumerate((10,12,14,16)): G[s_]=[dma[14+k]]
    if 'noepi' in OPT: epi=[f'v_mov_b32 v{HP+k}, 0' for k in range(4)]
    if 'nostats' in OPT: stats=[]
    for s in range(8,32):
        for t in trd(RING+4*(s%4),vQ+s//8,1024*(s%8)): G[s-4].append(('ds',t,s))
    val=epi+store+[('lw','st')]+stats
    gaps=list(range(3,28)); n=len(val); k=0
    for gi,s in enumerate(gaps):
        e=(gi+1)*n//len(gaps)
        G[s]+=val[k:e]; k=e
    stpos=[s for s in gaps if store[0] in G[s]][0]
    W=19
    G[W].insert(0,f's_waitcnt vmcnt({9 if stpos<W else 8})')
    own=[]
    for s in range(8): own+=[('ds',t,('o',s)) for t in trd(OWN+4*s,vQ,1024*s)]
    for i in range(8): G[W+1+i]+=own[2*i:2*i+2]
    def gap(s):
        for x in G[s]:
            if isinstance(x,tuple):
                if x[0]=='ds': lg.op(x[1],x[2])
                elif x[0]=='lw': lg.wait([x[1]])
                elif x[0]=='w2': A('s_cmp_eq_u32 s7, 0\ns_cbranch_scc1 B_w2ld\nB_w2ret:')
            else: A(x)
    def big(s):
        if s>=8: lg.wait([s])
        b=vr(OWN+4*s,4) if s<8 else vr(RING+4*(s%4),4)
        A(f'v_mfma_f32_32x32x16_bf16 {vr(P,16)}, {w1(s)}, {b}, '+('0' if s==0 else vr(P,16)))
    for s in range(29): big(s); gap(s)
    lg.all()
    if par==1: A('s_cmp_eq_u32 s43, 2\ns_cbranch_scc1 B_g1last')
    for x in small(OWN,1 if 'nosmall' in OPT else 8): A(x)
    big(29)
    A('s_lshr_b64 s[58:59], s[58:59], 8\ns_mov_b32 s3, s50\ns_mov_b32 s50, s51\ns_mov_b32 s51, s46\ns_mov_b32 s46, s3')
    sf=statfin()
    for x in sf[:5]: A(x)
    big(30)
    for x in sf[5:]: A(x)
    big(31)
    A(f'v_cmp_u_f32 vcc, v{STA+4}, v{STA+4}\ns_and_b64 vcc, vcc, s[56:57]\ns_cbranch_scc0 B_g1ok{par}\ns_call_b64 s[48:49], B_g1retry\nB_g1ok{par}:')
    A(f'ds_write_b32 v{vSW}, v{STA+4} offset:{1024*(1-par)}')
    A(f'v_mfma_f32_32x32x16_bf16 {vr(P,16)}, {vr(WX,4)}, {vr(MF,4)}, {vr(P,16)}')
def h_loads(A):
    A('s_mov_b32 s3, s54')
    for k in range(22):
        A(f'buffer_load_dwordx4 {vr(80+4*k,4)}, v{vLN}, s[8:11], s3 offen offset:{1024*(k%4)} sc1')
        if k%4==3: A('s_add_u32 s3, s3, 4096')
def kernelB(stop=None):
    A=Asm()
    TS = stop=='ts'
    def ts():
        if TS: A(('s_memtime' if 'cyc' in OPT else 's_memrealtime')+' s[86:87]\ns_mov_b32 m0, s88\ns_add_u32 s88, s88, 1\ns_waitcnt lgkmcnt(0)\nv_writelane_b32 v79, s86, m0')
    if TS: A('s_mov_b32 s88, 0\ns_memtime s[90:91]'); ts()
    A('''s_cmp_ge_u32 s2, 256
s_cbranch_scc1 B_end
s_load_dwordx2 s[70:71], s[0:1], 120
s_load_dwordx2 s[72:73], s[0:1], 104
s_load_dwordx2 s[74:75], s[0:1], 64
v_lshrrev_b32 v24, 6, v0
v_and_b32 v25, 63, v0
v_readfirstlane_b32 s6, v24
s_and_b32 s3, s2, 7
s_lshr_b32 s4, s2, 3
s_lshl_b32 s5, s3, 5
s_add_u32 s5, s5, s4
s_lshr_b32 s52, s5, 3
s_and_b32 s53, s5, 7''')
    A(f'''v_lshlrev_b32 v{vLN}, 4, v25
v_lshrrev_b32 v26, 3, v0
v_and_b32 v27, 7, v0
v_and_b32 v28, 1, v0
v_bfe_u32 v29, v0, 1, 2
v_lshlrev_b32 v{vCX}, 15, v26
v_lshl_add_u32 v{vCX}, v28, 6, v{vCX}
v_lshl_add_u32 v{vCX}, v29, 4, v{vCX}
v_lshlrev_b32 v{vCS}, 8, v26
v_lshl_add_u32 v{vCS}, v27, 4, v{vCS}
s_lshl_b32 s36, s5, 7
s_waitcnt lgkmcnt(0)''')
    srd(A,8,70,WS_SIZE); srd(A,12,70,16384,WS_ST0); srd(A,76,74,1024)
    for ct in range(8): A(f's_mov_b32 s{28+ct}, {16384*ct}')
    A(f'''s_mul_i32 s3, s5, {KTS}
s_add_u32 s3, s3, {hx(WS_KT)}
s_lshl_b32 s60, s6, 13
s_add_u32 s3, s3, s60
s_add_u32 m0, s60, {L_KT}
s_lshl_b32 s4, s5, 2
v_lshl_add_u32 v30, v28, 1, s4
v_mov_b32 v{vD}, 0
buffer_load_short_d16_hi v{vD}, v30, s[76:79], 0 offen''')
    for g in range(2):
        for k in range(4): A(f'buffer_load_dwordx4 v{vLN}, s[8:11], s3 offen offset:{1024*k} lds')
        A('s_add_u32 s3, s3, 4096\ns_add_u32 m0, m0, 4096\ns_nop 0')
    A(f'buffer_load_dwordx4 v{vLN}, s[8:11], s3 offen lds')
    conv_loads(A)
    A('''s_mov_b32 s42, 0x40
s_cmp_lt_u32 s5, 132
s_cbranch_scc0 B_m2
s_mul_i32 s41, s5, 171
s_lshr_b32 s41, s41, 10
s_mul_i32 s3, s41, 6
s_sub_u32 s40, s5, s3
s_branch B_m3
B_m2:
s_sub_u32 s4, s5, 132
s_cmp_ge_u32 s4, 110
s_cselect_b32 s42, 0, s42
s_cselect_b32 s3, 14, 0
s_sub_u32 s4, s4, s3
s_mul_i32 s41, s4, 205
s_lshr_b32 s41, s41, 10
s_mul_i32 s3, s41, 5
s_sub_u32 s40, s4, s3
s_add_u32 s40, s40, 6
B_m3:
s_lshl_b32 s41, s41, 2
s_add_u32 s41, s41, s6''')
    A(f's_mul_i32 s61, s41, {33*1024}\ns_add_u32 s61, s61, {hx(WS_W1)}')
    for i in range(4): A(f's_add_u32 s3, s6, {i}\ns_and_b32 s3, s3, 3\ns_lshl_b32 s{66+i}, s3, 13')
    for s in range(32):
        if s%4==0: A(f's_add_u32 s3, s61, s{66+s//8}' if s%8==0 else 's_add_u32 s3, s3, 4096')
        A(f'buffer_load_dwordx4 {w1(s)}, v{vLN}, s[8:11], s3 offen offset:{1024*(s%4)}')
    A(f's_add_u32 s3, s61, 32768\nbuffer_load_dwordx4 {vr(WX,4)}, v{vLN}, s[8:11], s3 offen')
    srd(A,16,72,2*MB); srd(A,20,70,0); srd(A,24,70,0)
    A('''s_or_b32 s3, s40, s42
s_or_b32 s3, s3, 0x80
s_add_u32 s4, s3, 11
s_add_u32 s61, s3, 22
s_cmp_eq_u32 s40, 10
s_cselect_b32 s61, 0x9f, s61
s_lshl_b32 s4, s4, 8
s_lshl_b32 s61, s61, 16
s_or_b32 s3, s3, s4
s_or_b32 s3, s3, s61
s_lshl_b32 s80, s3, 8
s_add_u32 s81, s3, 0x202020
s_mov_b32 s7, 0
s_mov_b32 s39, 0x8000
s_mov_b64 s[56:57], -1
s_mov_b32 s62, 0xaaaaaaaa
s_mov_b32 s63, 0xaaaaaaaa
s_mov_b32 s64, 0xcccccccc
s_mov_b32 s65, 0xcccccccc''')
    A(f'''v_and_b32 v31, 15, v0
v_bfe_u32 v32, v0, 4, 2
v_lshrrev_b32 v33, 1, v24
v_and_b32 v34, 1, v24
v_sub_u32 v35, 3, v31
v_and_b32 v35, 3, v35
v_lshl_add_u32 v36, v33, 2, v35
s_movk_i32 s3, {KC}
v_mul_lo_u32 v36, v36, s3
v_add_u32 v35, v35, v31
v_lshlrev_b32 v35, 1, v35
v_sub_u32 v36, v36, v35
v_lshl_add_u32 v36, v32, 4, v36
v_lshlrev_b32 v35, 8, v34
v_sub_u32 v36, v36, v35
v_add_u32 v{vKA}, {L_KT+2*2031-192-3584}, v36
s_movk_i32 s3, {UCH}
v_mul_lo_u32 v36, v33, s3
v_lshl_add_u32 v36, v31, 5, v36
v_lshl_add_u32 v36, v32, 4, v36
v_sub_u32 v36, v36, v35
v_add_u32 v{vUB}, {L_U+480-192}, v36
v_mul_lo_u32 v36, v28, s3
v_lshl_add_u32 v36, v26, 6, v36
v_lshl_add_u32 v36, v29, 4, v36
v_add_u32 v{vUW}, {L_U+512}, v36
s_movk_i32 s3, {YW}
v_mul_lo_u32 v36, v24, s3
v_lshl_add_u32 v36, v32, 4, v36
s_movk_i32 s4, 80
v_mad_u32_u24 v36, v31, s4, v36
v_add_u32 v{vYW}, {L_Y}, v36
v_lshlrev_b32 v36, 1, v28
v_mul_lo_u32 v36, v36, s3
v_lshrrev_b32 v37, 2, v0
v_mad_u32_u24 v36, v37, s4, v36
v_and_b32 v37, 1, v29
v_lshl_add_u32 v36, v37, 5, v36
v_add_u32 v{vYR}, {L_Y}, v36
v_bfe_u32 v36, v0, 2, 2
v_bfe_u32 v37, v0, 5, 1
v_lshl_add_u32 v36, v37, 3, v36
v_lshlrev_b32 v36, 6, v36
v_and_b32 v38, 1, v32
v_lshl_add_u32 v36, v38, 5, v36
v_and_b32 v38, 3, v0
v_lshl_add_u32 v{vL}, v38, 3, v36
v_and_b32 v39, 31, v0
v_lshlrev_b32 v36, 5, v39
v_add_u32 v{vSR}, {L_SX}, v36
v_lshl_add_u32 v36, v37, 4, v{vSR}
v_lshl_add_u32 v{vSW}, v24, 2, v36
s_movk_i32 s3, {RW}
v_mad_u32_u24 v{vRW}, v24, s3, v{vLN}
v_lshl_add_u32 v36, v33, 2, v38
s_movk_i32 s3, 1088
v_lshrrev_b32 v40, 2, v25
v_lshl_add_u32 v40, v34, 4, v40
v_lshlrev_b32 v40, 4, v40
v_mad_u32_u24 v{vRR}, v36, s3, v40
v_lshlrev_b32 v36, 10, v39
v_lshl_add_u32 v36, v24, 5, v36
v_lshl_add_u32 v{vOUT}, v37, 4, v36
v_lshlrev_b32 v{vXW}, 4, v0
v_mov_b32 v{vON}, 0x3f803f80
v_mov_b32 v{vON+1}, 0x3f803f80
v_mov_b32 v40, 0
v_lshlrev_b32 v36, 2, v0
v_add_u32 v37, {UCH-512}, v36
v_cmp_gt_u32 vcc, 0x80, v0
s_nop 1
v_cndmask_b32 v36, v37, v36, vcc
v_add_u32 v36, {L_U}, v36
ds_write_b32 v36, v40
s_waitcnt vmcnt(33)''')
    A('B_layer:')
    A(f'''s_lshl_b32 s3, s7, 21
s_add_u32 s37, s36, {hx(WS_X1)}
s_add_u32 s44, s3, {hx(WS_X1)}
s_lshl_b32 s4, s52, 15
s_add_u32 s55, s44, s4
s_lshl_b32 s4, s53, 12
s_add_u32 s55, s55, s4
s_add_u32 s44, s44, s60
s_mul_i32 s3, s7, {HSZ}
s_add_u32 s3, s3, {hx(WS_H)}
s_lshl_b32 s4, s41, 10
s_add_u32 s47, s3, s4
s_mul_i32 s4, s52, {88*1024}
s_add_u32 s54, s3, s4
s_mul_i32 s4, s6, {22*1024}
s_add_u32 s54, s54, s4
s_mov_b64 s[58:59], s[80:81]
s_mov_b32 s50, 0
s_mov_b32 s51, 0x8000
s_mov_b32 s46, 0x10000
s_mov_b32 s38, 0
v_mov_b32 v{vUT}, v{vUB}''')
    for r in range(16): A(f'v_mov_b32 v{ACC+r}, 0')
    A('B_half0:'); ts(); A('B_half:')
    A('v_cmp_eq_u32 s[82:83], -1, v144')
    for st in (16,8,4):
        for h in range(2):
            for k in range(st): A(f'v_add_f32 v{80+32*h+k}, v{80+32*h+k}, v{80+32*h+st+k}')
    S,Q=80,112
    for k in range(4): A(f'v_mul_f32 v{S+k}, {F(1/512)}, v{S+k}\nv_mul_f32 v{Q+k}, {F(1/512)}, v{Q+k}')
    for k in range(4): A(f'v_fma_f32 v{Q+k}, -v{S+k}, v{S+k}, v{Q+k}')
    A(f'v_cmp_u_f32 s[84:85], v{Q}, v{Q+1}\nv_cmp_u_f32 vcc, v{Q+2}, v{Q+3}\ns_or_b64 s[82:83], s[82:83], s[84:85]\ns_or_b64 vcc, vcc, s[82:83]\ns_and_b64 vcc, vcc, s[56:57]\ns_cbranch_scc1 B_cretry')
    for k in range(4): A(f'v_max_f32 v{Q+k}, 0, v{Q+k}')
    for x in rnd(Q,2,88): A(x)
    for k in range(4): A(f'v_add_f32 v{Q+k}, {F(1e-5)}, v{Q+k}')
    for x in rnd(Q,2,88): A(x)
    for k in range(4): A(f'v_sqrt_f32 v{Q+k}, v{Q+k}')
    for x in rnd(S,2,88)+rnd(Q,2,88): A(x)
    for k in range(4): A(f'v_rcp_f32 v{Q+k}, v{Q+k}')
    X=TMP; UP=TMP+8; UD=TMP+12
    for x in unpack(144,X,4): A(x)
    qp=lambda k: 'quad_perm:[0,0,2,2]' if k<4 else 'quad_perm:[1,1,3,3]'
    for k in range(8): A(f'v_subrev_f32_dpp v{88+k}, v{S+k%4}, v{X+k} {qp(k)} row_mask:0xf bank_mask:0xf')
    for x in rnd(88,4,96): A(x)
    for k in range(8): A(f'v_mul_f32_dpp v{88+k}, v{Q+k%4}, v{88+k} {qp(k)} row_mask:0xf bank_mask:0xf')
    for x in pack(88,UP,4): A(x)
    A(f'ds_write_b128 v{vUW}, {vr(UP,4)}')
    A('s_cmp_eq_u32 s38, 0\ns_cbranch_scc1 B_nodma')
    for x in x_dma(A,1,50)+x_dma(A,2,51): A(x)
    A('B_nodma:\ns_waitcnt lgkmcnt(0)\ns_barrier'); ts()
    def frag(ub):
        def f(fr,reg):
            k,rr,i=fr
            if k=='A':
                o=64*(3-rr)+512*(7-i); return [f'ds_read_b64 {vr(reg,2)}, v{vKA} offset:{o}', f'ds_read_b64 {vr(reg+2,2)}, v{vKA} offset:{o+8}']
            return [f'ds_read_b128 {vr(reg,4)}, v{ub} offset:{512*i+64*(3-rr)}']
        return f
    slots=[148+4*k for k in range(14)]
    mf=[]
    for rr in range(4):
        for j in range(4):
            for q in range(j+1):
                y=vr(ACC+4*j,4); mf.append((('A',rr,q),('B',rr,j-q),f'v_mfma_f32_16x16x32_bf16 {y}, {{a}}, {{b}}, {y}'))
    fl=unpack(UP,UD,4)+[f'v_mul_f32 v{UD+k}, v{vD}, v{UD+k}' for k in range(8)]+rnd(UD,4,UP)
    pipe(A,mf,frag(vUT),slots,2,fl,pre=9)
    A('s_cmp_eq_u32 s38, 0\ns_cbranch_scc0 B_nold')
    A(f's_add_u32 s36, s36, 0x100000\nv_add_u32 v{vCS}, 0x2000, v{vCS}')
    conv_loads(A)
    A('B_nold:\ns_nop 4')
    for j in range(4): A(f'ds_write_b128 v{vYW}, {vr(ACC+4*j,4)} offset:{1280*j}')
    A('s_waitcnt lgkmcnt(0)\ns_barrier')
    for k in range(4): A(f'ds_read_b128 {vr(148+4*k,4)}, v{vYR} offset:{YW*(k//2)+16*(k%2)}')
    A('s_waitcnt lgkmcnt(0)')
    for k in range(8): A(f'v_add_f32 v{148+k}, v{148+k}, v{156+k}')
    for x in rnd(148,4,156): A(x)
    for k in range(8): A(f'v_add_f32 v{148+k}, v{148+k}, v{UD+k}')
    for x in rnd(148,4,156): A(x)
    for k in range(8): A(f'v_add_f32 v{148+k}, v{148+k}, v{X+k}')
    for x in pack(148,UP,4): A(x)
    A(f'buffer_store_dwordx4 {vr(UP,4)}, v{vCX}, s[8:11], s37 offen sc1')
    ts(); A('s_cmp_eq_u32 s38, 0\ns_cbranch_scc0 B_g1')
    mf=[]
    for rr in range(4):
        for q in range(1,8):
            for j in range(4):
                m=4+j-q
                if 0<=m<4:
                    y=vr(ACC+4*j,4); mf.append((('A',rr,q),('B',rr,m),f'v_mfma_f32_16x16x32_bf16 {y}, {{a}}, {{b}}, '+('0' if rr==0 and m==3 else y)))
    pipe(A,mf,frag(vUB),slots,2,(),pre=9)
    A(f'''s_mov_b32 s38, 1
s_add_u32 s37, s37, 0x100000
v_add_u32 v{vUT}, 0x800, v{vUT}
v_add_u32 v{vUW}, 0x800, v{vUW}
s_waitcnt vmcnt(1)
s_branch B_half0''')
    A('B_cretry:'); retry_tick(A); conv_loads(A); A('s_waitcnt vmcnt(0)\ns_branch B_half')
    A('B_g1retry:'); retry_tick(A)
    for x in x_dma(A,1,50): A(x)
    A('s_waitcnt vmcnt(0)\nB_g1chk:')
    for s in range(8):
        for t in trd(OWN+4*s,vQ,1024*s): A(t)
    A('s_waitcnt lgkmcnt(0)')
    for x in small(OWN,8): A(x)
    A('s_nop 4')
    for x in statfin(): A(x)
    A(f'v_cmp_u_f32 vcc, v{STA+4}, v{STA+4}\ns_and_b64 vcc, vcc, s[56:57]\ns_cbranch_scc1 B_g1retry\ns_setpc_b64 s[48:49]')
    A('B_w2ld:')
    A(f's_mul_i32 s3, s53, {88*2048}\ns_mul_i32 s4, s6, {22*2048}\ns_add_u32 s3, s3, s4\ns_lshl_b32 s4, s43, 14\ns_add_u32 s3, s3, s4\ns_add_u32 s3, s3, {hx(WS_W2)}')
    for it in range(3):
        if it<2: A(f's_cmp_eq_u32 s43, {it}\ns_cbranch_scc0 B_w2n{it}')
        for k in range(16 if it<2 else 12):
            A(f'buffer_load_dwordx4 {ar(64*it+4*k,4)}, v{vLN}, s[8:11], s3 offen offset:{1024*(k%4)}')
            if k%4==3: A('s_add_u32 s3, s3, 4096')
        A('s_branch B_w2ret')
        if it<2: A(f'B_w2n{it}:')
    A('B_g1:')
    if stop=='conv': A('s_endpgm')
    A(f'''v_subrev_u32 v{vUW}, 0x800, v{vUW}
v_subrev_u32 v{vCS}, 0x2000, v{vCS}
v_add_u32 v{vQ}, s60, v{vL}
v_mov_b32 v{MF+2}, 0
v_mov_b32 v{MF+3}, 0
s_mov_b32 s43, 0
s_waitcnt vmcnt(9)
s_call_b64 s[48:49], B_g1chk
ds_write_b32 v{vSW}, v{STA+4}
B_g1loop:'''); ts()
    g1_tile(A,0); g1_tile(A,1)
    A('s_add_u32 s43, s43, 1\ns_branch B_g1loop\nB_g1last:')
    P=ACC+16
    for s in (29,30,31): A(f'v_mfma_f32_32x32x16_bf16 {vr(P,16)}, {w1(s)}, {vr(RING+4*(s%4),4)}, {vr(P,16)}')
    A(f'v_mfma_f32_32x32x16_bf16 {vr(P,16)}, {vr(WX,4)}, {vr(MF,4)}, {vr(P,16)}')
    A('s_lshr_b64 s[58:59], s[58:59], 8')
    pre,epi,store=g1_epi(P,TMP+4,TMP+16)
    for x in pre: A(x)
    A('s_nop 7')
    h_loads(A)
    for x in epi+store: A(x)
    if stop=='g1': A('s_endpgm')
    ts(); A('s_mov_b32 s38, 0\nB_g2:')
    grp=[(0,3),(3,8),(8,15),(15,22)]
    for gi,(a,b) in enumerate(grp):
        A(f's_waitcnt vmcnt({22-b+(1 if gi==0 else 2)})')
        r=[80+4*k for k in range(a,b)]
        A(f'v_max3_u32 v{TMP}, v{r[0]}, v{r[1]}, v{r[2]}')
        for k in range(3,len(r),2): A(f'v_max3_u32 v{TMP}, v{TMP}, v{r[k]}, v{r[k+1]}')
        A(f'v_cmp_eq_u32 vcc, -1, v{TMP}\ns_and_b64 vcc, vcc, s[56:57]\ns_cbranch_scc1 B_g2retry')
        if gi==0: A(f'buffer_load_dwordx4 v[200:203], v{vXW}, s[8:11], s55 offen sc1')
        for k in range(a,b):
            for cb in range(2):
                y=vr(ACC+16*cb,16); A(f'v_mfma_f32_32x32x16_bf16 {y}, {vr(80+4*k,4)}, {ar(8*k+4*cb,4)}, '+('0' if k==0 else y))
    A(f'''s_waitcnt vmcnt(0)
s_cmp_eq_u32 s38, 0
s_cbranch_scc0 B_g2b
s_add_u32 s54, s54, {32*88*1024}''')
    h_loads(A)
    A('''s_branch B_g2c
B_g2b:
s_cmp_eq_u32 s7, 0
s_cbranch_scc0 B_g2c
s_add_u32 s36, s36, 0x100000''')
    srd(A,12,70,131072,WS_ST1)
    conv_loads(A)
    A('B_g2c:\ns_nop 7'); ts()
    for k in range(8): A(f'ds_write_b128 v{vRW}, {vr(ACC+4*k,4)} offset:{1088*k}')
    for x in unpack(200,TMP,4): A(x)
    A('s_waitcnt lgkmcnt(0)\ns_barrier')
    for k in range(8): A(f'ds_read_b128 {vr(168+4*k,4)}, v{vRR} offset:{RW*(k//2)+512*(k%2)}')
    A('s_waitcnt lgkmcnt(4)')
    for k in range(8): A(f'v_add_f32 v{168+k}, v{168+k}, v{176+k}')
    A('s_waitcnt lgkmcnt(0)')
    for k in range(8): A(f'v_add_f32 v{184+k}, v{184+k}, v{192+k}')
    for k in range(8): A(f'v_add_f32 v{168+k}, v{168+k}, v{184+k}')
    for x in rnd(168,4,176): A(x)
    for k in range(8): A(f'v_add_f32 v{168+k}, v{168+k}, v{TMP+k}')
    for x in pack(168,200,4): A(x)
    A(f'''v_add_u32 v{TMP}, {L_XT}, v{vXW}
v_add_u32 v{TMP+1}, {L_XT}, v{vL}
ds_write_b128 v{TMP}, v[200:203]
s_cmp_eq_u32 s7, 0
s_cbranch_scc0 B_g2o
s_sub_u32 s3, s55, {hx(WS_X1-WS_X2)}
buffer_store_dwordx4 v[200:203], v{vXW}, s[8:11], s3 offen sc1
s_waitcnt lgkmcnt(0)
s_barrier''')
    for s in range(4):
        for t in trd(168+4*s,TMP+1,1024*s): A(t)
    A(f'''s_lshl_b32 s3, s38, 5
s_add_u32 s3, s3, s52
s_lshl_b32 s3, s3, 8
s_lshl_b32 s4, s53, 14
s_add_u32 s3, s3, s4
s_add_u32 s3, s3, {hx(WS_ST1)}
s_lshl_b32 s4, s6, 4
s_mov_b64 s[82:83], 0xffff
s_lshl_b64 s[82:83], s[82:83], s4
v_lshrrev_b32 v{TMP+2}, 2, v{vLN}
s_waitcnt lgkmcnt(0)''')
    for x in small(168,4,184): A(x)
    A('s_nop 4')
    for x in statfin(184): A(x)
    A(f'''s_mov_b64 exec, s[82:83]
buffer_store_dword v188, v{TMP+2}, s[8:11], s3 offen sc1
s_mov_b64 exec, -1
s_branch B_g2e
B_g2o:''')
    A(f'''s_lshl_b32 s3, s6, 10
v_add_u32 v{TMP+1}, s3, v{TMP+1}
s_lshl_b32 s3, s38, 5
s_add_u32 s3, s3, s52
s_lshl_b32 s3, s3, 15
s_lshl_b32 s4, s53, 7
s_add_u32 s3, s3, s4
s_waitcnt lgkmcnt(0)''')
    for t in trd(168,TMP+1,0): A(t)
    A(f'''s_waitcnt lgkmcnt(0)
buffer_store_dwordx4 v[168:171], v{vOUT}, s[16:19], s3 offen
s_barrier
B_g2e:''')
    ts()
    A(f'''s_add_u32 s55, s55, 0x100000
s_add_u32 s38, s38, 1
s_cmp_eq_u32 s38, 1
s_cbranch_scc1 B_g2
s_add_u32 s7, s7, 1
s_cmp_eq_u32 s7, 1
s_cbranch_scc0 B_fin''')
    if stop=='l0': A('s_endpgm')
    A('s_waitcnt vmcnt(2)\ns_branch B_layer')
    A('B_g2retry:'); retry_tick(A); h_loads(A); A('s_waitcnt vmcnt(0)\ns_branch B_g2')
    A('B_fin:')
    if TS:
        A('s_waitcnt vmcnt(0)'); ts()
        A(f's_sub_u32 s86, 0x8000, s39\ns_mul_i32 s86, s86, 100\nv_readlane_b32 s3, v79, 0\ns_nop 3\ns_add_u32 s86, s86, s3\ns_mov_b32 m0, s88\ns_add_u32 s88, s88, 1\nv_writelane_b32 v79, s86, m0')
        A('s_memtime s[92:93]\ns_waitcnt lgkmcnt(0)\ns_sub_u32 s86, s92, s90\ns_add_u32 s86, s86, s3\ns_mov_b32 m0, s88\ns_add_u32 s88, s88, 1\nv_writelane_b32 v79, s86, m0')
        A(f's_lshl_b32 s3, s2, 2\ns_add_u32 s3, s3, s6\ns_lshl_b32 s3, s3, 7\ns_add_u32 s3, s3, {hx(WS_DBG)}\nv_lshrrev_b32 v1, 2, v{vLN}\nv_lshrrev_b32 v2, 2, v1\nv_cmp_gt_u32 vcc, s88, v2\ns_and_saveexec_b64 s[4:5], vcc\nbuffer_store_dword v79, v1, s[8:11], s3 offen')
    A('B_end:\ns_endpgm')
    return A.text()
```

```python
import sys
from k2b import *
import haz
def build(TS):
    ref=open('cdna_kernels/'+NAME+'.s.ref').read().split('\n')
    hdr='\n'.join(l for l in ref if l.startswith(';') and '@launch' not in l)
    A=kernel(TS); print('hazards',haz.check(A.l),'lines',len(A.l))
    n=NAME+'_kernel'
    return hdr+f'\n; @launch grid=(256,1,1) block=(256,1,1) lds={LDS_B}\n.amdgcn_target "amdgcn-amd-amdhsa--gfx950"\n.text\n.globl {n}\n.p2align 8\n.type {n},@function\n{n}:\n'+A.text()+'.section .rodata,"a"\n.p2align 6\n'+desc(n,512,256)
open(sys.argv[1],'w').write(build(len(sys.argv)>2))
```
